```python
import torch

def _softmax(x, axis=-1):
    return torch.softmax(x, dim=axis)
def _gelu(x):
    return torch.nn.functional.gelu(x, approximate="tanh")
def _silu(x):
    return torch.nn.functional.silu(x)
def _sigmoid(x):
    return torch.sigmoid(x)
def _layernorm(x, axis=-1, eps=1e-5):
    m = x.mean(dim=axis, keepdim=True)
    v = x.var(dim=axis, keepdim=True, unbiased=False)
    return (x - m) / torch.sqrt(v + eps)
def _scatter_add(tgt, idx, src, axis=0):
    return tgt.clone().index_add_(axis, idx, src)
def _segment_sum(src, seg, n):
    out = torch.zeros((n,) + src.shape[1:], dtype=src.dtype)
    return out.index_add_(0, seg, src)
def _pad(x, pw):
    flat = tuple(v for pair in reversed(pw) for v in pair)
    return torch.nn.functional.pad(x, flat)

kernel_name = 'interleave_layers__sliding_block_cached__glu_gated_glu__decode'

def setup_inputs():

    _w = (lambda a: (lambda t: t.to(torch.bfloat16) if t.is_floating_point() else t)(torch.as_tensor(a)))
    def _A_setup():
        B, Sq, D = 1, 1, 512
        Hq, Hkv, Sk, Dh = 32, 8, 32768, 128
        assert Hq % Hkv == 0, (Hq, Hkv)
        return {
            "x": _w((lambda *s: torch.randn(*s, dtype=torch.bfloat16) * 0.05)(B, Sq, D)),
            "k_cache": _w((lambda *s: torch.randn(*s, dtype=torch.bfloat16) * 1.6)(B, Hkv, Sk, Dh)),
            "v_cache": _w((lambda *s: torch.randn(*s, dtype=torch.bfloat16) * 1.6)(B, Hkv, Sk, Dh)),
            "wq": _w((lambda *s: torch.randn(*s, dtype=torch.bfloat16) * 1.6)(D, Hq * Dh) * (D ** -0.5)),
            "wo": _w((lambda *s: torch.randn(*s, dtype=torch.bfloat16) * 1.6)(Hq * Dh, D) * ((Hq * Dh) ** -0.5)),
        }
    _A_in = _A_setup()

    def _B_setup():
        B, S, D, F = 1, 1, 512, 1792
        return {
            "x": _w((lambda *s: torch.randn(*s, dtype=torch.bfloat16) * 0.05)(B, S, D)),
            "w_gate": _w((lambda *s: torch.randn(*s, dtype=torch.bfloat16) * 0.05)(D, F)),
            "w_up": _w((lambda *s: torch.randn(*s, dtype=torch.bfloat16) * 0.05)(D, F)),
            "w_down": _w((lambda *s: torch.randn(*s, dtype=torch.bfloat16) * 0.05)(F, D)),
        }
    _B_in = _B_setup()

    return {
        "A_x": _A_in["x"],
        "A_k_cache": _A_in["k_cache"],
        "A_v_cache": _A_in["v_cache"],
        "A_wq": _A_in["wq"],
        "A_wo": _A_in["wo"],
        "B_x": _B_in["x"],
        "B_w_gate": _B_in["w_gate"],
        "B_w_up": _B_in["w_up"],
        "B_w_down": _B_in["w_down"],
    }

def reference(A_x, A_k_cache, A_v_cache, A_wq, A_wo, B_x, B_w_gate, B_w_up, B_w_down):
    def _A_ref(x, k_cache, v_cache, wq, wo):
        B, Sq, D = x.shape
        Hq, Dh = 32, 128
        Hkv, Sk = k_cache.shape[1], k_cache.shape[2]
        W = min(4096, max(256, Sk // 4))
        rep = Hq // Hkv
        q = (lambda x, *d: x.permute(*d))((x @ wq).reshape(B, Sq, Hq, Dh), 0, 2, 1, 3)
        k = (lambda x, n, axis: torch.repeat_interleave(x, n, dim=axis))(k_cache[:, :, Sk - W:, :], rep, axis=1)
        v = (lambda x, n, axis: torch.repeat_interleave(x, n, dim=axis))(v_cache[:, :, Sk - W:, :], rep, axis=1)
        scores = torch.einsum("bhqd,bhkd->bhqk", q, k) * (Dh ** -0.5)
        p = _softmax(scores, axis=-1)
        o = torch.einsum("bhqk,bhkd->bhqd", p, v)
        return (lambda x, *d: x.permute(*d))(o, 0, 2, 1, 3).reshape(B, Sq, Hq * Dh) @ wo

    def _B_ref(x, w_gate, w_up, w_down):
        g = torch.einsum("bsd,df->bsf", x, w_gate)
        u = torch.einsum("bsd,df->bsf", x, w_up)
        h = _sigmoid(g) * u
        return torch.einsum("bsf,fd->bsd", h, w_down)

    x = A_x
    x = x + _A_ref(_layernorm(x, axis=-1), A_k_cache, A_v_cache, A_wq, A_wo)
    x = x + _B_ref(_layernorm(x, axis=-1), B_w_gate, B_w_up, B_w_down)
    x = x + _A_ref(_layernorm(x, axis=-1), A_k_cache, A_v_cache, A_wq, A_wo)
    x = x + _B_ref(_layernorm(x, axis=-1), B_w_gate, B_w_up, B_w_down)
    return x
```

```python
import re

TRANS = ("v_exp_f32","v_log_f32","v_rcp_f32","v_rsq_f32","v_sqrt_f32","v_sin_f32","v_cos_f32")

def parse_regs(tok):
    tok = tok.strip()
    tok = tok.lstrip('-')
    m = re.fullmatch(r'(?:abs\()?([vsa])(\d+)\)?', tok)
    if m: return [(m.group(1), int(m.group(2)))]
    m = re.fullmatch(r'([vsa])\[(\d+):(\d+)\]', tok)
    if m: return [(m.group(1), i) for i in range(int(m.group(2)), int(m.group(3))+1)]
    if tok == 'vcc': return [('s', 106), ('s', 107)]
    if tok == 'exec': return [('s', 126), ('s', 127)]
    return []

class Asm:
    def __init__(self):
        self.lines = []
        self.hist = []
    def raw(self, text):
        self.lines.append(text)
    def comment(self, text):
        self.lines.append("    ; " + text)
    def label(self, name):
        self.lines.append(name + ":")
    def nop(self, n):
        while n > 0:
            k = min(n, 16)
            self.lines.append(f"    s_nop {k-1}")
            self.hist.append(dict(kind='nop', w=set(), r=set(), states=k))
            n -= k
    def _dist(self, pred):
        d = 0
        for h in reversed(self.hist):
            if pred(h): return d
            d += h['states']
            if d > 40: break
        return 1000
    def __call__(self, text):
        text = text.strip()
        code = text.split(';')[0].strip()
        parts = code.split(None, 1)
        op = parts[0]
        ops = []
        mods = ''
        if len(parts) > 1:
            toks = [t.strip() for t in parts[1].split(',')]
            last = toks[-1].split()
            if last:
                toks[-1] = last[0]; mods = ' '.join(last[1:])
            ops = toks
        is_dpp = ('_dpp' in op) or ('row_' in code) or ('quad_perm' in code)
        kind = 'other'
        w = set(); r = set()
        if op.startswith('v_mfma'):
            kind = 'mfma'
            w = set(parse_regs(ops[0]));
            ab = set(parse_regs(ops[1])) | set(parse_regs(ops[2])); c = set(parse_regs(ops[3]))
            r = ab | c
        elif op.startswith('v_permlane'):
            kind = 'permlane'; w = set(parse_regs(ops[0])) | set(parse_regs(ops[1])); r = set(w)
        elif op.startswith('v_readfirstlane') or op.startswith('v_readlane'):
            kind = 'readlane'; w = set(parse_regs(ops[0])); r = set(x for o in ops[1:] for x in parse_regs(o))
        elif op.startswith('v_cmp'):
            kind = 'valu'; w = set(parse_regs(ops[0])); r = set(x for o in ops[1:] for x in parse_regs(o))
        elif op.startswith('v_'):
            kind = 'trans' if op.replace('_e32','').replace('_e64','') in TRANS else 'valu'
            w = set(parse_regs(ops[0])); r = set(x for o in ops[1:] for x in parse_regs(o))
            if op.startswith('v_fmac') or op.startswith('v_pk_fmac'): r |= w
            if is_dpp: r |= w
            if op.startswith('v_add_co') or op.startswith('v_addc_co'):
                w |= set(parse_regs(ops[1]))
        elif op.startswith('global_load') or op.startswith('buffer_load') or op.startswith('ds_read') or op.startswith('ds_bpermute') or op.startswith('ds_swizzle'):
            kind = 'vmem' if not op.startswith('ds_') else 'ds'
            w = set(parse_regs(ops[0])); r = set(x for o in ops[1:] for x in parse_regs(o))
        elif op.startswith('global_store') or op.startswith('buffer_store') or op.startswith('ds_write') or op.startswith('global_atomic') or op.startswith('ds_add'):
            kind = 'vmem' if not op.startswith('ds_') else 'ds'
            r = set(x for o in ops for x in parse_regs(o))
        elif op.startswith('s_'):
            kind = 'salu'
            if op in ('s_waitcnt','s_barrier','s_branch','s_endpgm','s_sleep','s_setprio') or op.startswith('s_cbranch') or op.startswith('s_cmp'):
                r = set(x for o in ops for x in parse_regs(o))
            else:
                w = set(parse_regs(ops[0])) if ops else set(); r = set(x for o in ops[1:] for x in parse_regs(o))
        need = 0
        vr = {x for x in r if x[0] in 'va'}; vw = {x for x in w if x[0] in 'va'}
        sr = {x for x in r if x[0]=='s'}
        valu_like = ('valu','trans','permlane','readlane')
        def req(n, pred):
            nonlocal need
            d = self._dist(pred)
            if d < n: need = max(need, n-d)
        if kind == 'mfma':
            req(8, lambda h: h['kind']=='mfma' and (h['w'] & ab))
            req(6, lambda h: h['kind']=='mfma' and (h['w'] & c) and h['w'] != c)
            req(2, lambda h: h['kind'] in valu_like and (h['w'] & r))
            req(8, lambda h: h['kind']=='mfma' and (h['w'] & w) and h['w'] != c)
        else:
            if vr or vw:
                req(8, lambda h: h['kind']=='mfma' and (h['w'] & (vr|vw)))
            if kind in valu_like and vw:
                req(3, lambda h: h['kind']=='mfma' and (h.get('c',set()) & vw))
        if kind in valu_like or kind == 'mfma':
            if is_dpp: req(2, lambda h: h['kind'] in valu_like and (h['w'] & vr))
            if kind == 'permlane': req(2, lambda h: h['kind'] in valu_like and (h['w'] & vr))
            if kind == 'readlane': req(1, lambda h: h['kind'] in valu_like and (h['w'] & vr))
            if kind != 'trans': req(1, lambda h: h['kind']=='trans' and (h['w'] & vr))
            if sr: req(2, lambda h: h['kind'] in valu_like and (h['w'] & sr))
            if vw: req(2, lambda h: h['kind']=='vmem' and h.get('wide') and (h['r'] & vw))
        if kind == 'vmem' and sr:
            req(5, lambda h: h['kind'] in valu_like and (h['w'] & sr))
        if kind == 'salu' and sr:
            req(1, lambda h: h['kind'] in valu_like and (h['w'] & sr))
        if need: self.nop(need)
        self.lines.append("    " + text)
        h = dict(kind=kind, w=w, r=r, states=1)
        if kind == 'mfma': h['c'] = c
        if kind == 'vmem' and ('store' in op) and ('x4' in op or 'x3' in op): h['wide'] = True
        self.hist.append(h)
        if len(self.hist) > 64: self.hist = self.hist[-64:]
    def text(self):
        return "\n".join(self.lines) + "\n"
```

```python
import sys, struct
from asmlib import Asm

NAME = "interleave_layers__sliding_block_cached__glu_gated_glu__decode"
STAMPS = "--stamps" in sys.argv

GSTRIDE = 147456
LSTRIDE = 73728
OFF_P, OFF_ML, OFF_O, OFF_H, OFF_XA, OFF_XB, OFF_Q = 0, 65536, 66560, 67584, 68608, 70656, 72704
INIT = 8*GSTRIDE
STAMP_OFF = 2*1024*1024
L_PQ = [0, 5120, 10240, 15360]
L_AO = 20480
L_AM = 29184
L_MODE = 29312
LDS_BYTES = 32768

def f2u(f): return struct.unpack("<I", struct.pack("<f", f))[0]
import math
C_SCALE = f2u((128**-0.5) * math.log2(math.e))
LOG2E = f2u(math.log2(math.e))

a = Asm()
A = a
uid = [0]
def L(prefix):
    uid[0] += 1
    return f"L_{prefix}_{uid[0]}"

def stamp(k, anyw=False):
    if not STAMPS: return
    if anyw:
        ls = L("stp")
        A("s_cmp_lg_u32 s30, 13"); A(f"s_cbranch_scc1 {ls}")
        stamp(k)
        a.label(ls)
        return
    A("s_memrealtime s[60:61]")
    A("s_waitcnt lgkmcnt(0)")
    A("s_mov_b64 s[62:63], exec")
    A("s_mov_b64 exec, 1")
    A("v_mov_b32 v126, s60")
    A("v_mov_b32 v127, s61")
    A(f"s_lshl_b32 s64, s2, 9")
    A(f"s_add_u32 s64, s64, {STAMP_OFF + k*8}")
    A("v_mov_b32 v125, s64")
    A("global_store_dwordx2 v125, v[126:127], s[26:27]")
    A("s_mov_b64 exec, s[62:63]")

def store_mode(instr):
    l1 = L("st"); l2 = L("st")
    A("s_cmp_eq_u32 s31, 0")
    A(f"s_cbranch_scc1 {l1}")
    A(instr)
    A(f"s_branch {l2}")
    a.label(l1)
    A(instr + " sc1")
    a.label(l2)

def spin_head(l):
    A("s_mov_b32 s65, 0x400000")
    a.label(l)
    A("s_sub_u32 s65, s65, 1")
    A("s_cbranch_scc1 L_end")

def poll(loads, regs, tmp):
    l = L("poll")
    spin_head(l)
    for x in loads: A(x)
    A("s_waitcnt vmcnt(0)")
    rs = list(regs)
    if len(rs) == 1:
        A(f"v_cmp_eq_u32 vcc, -1, v{rs[0]}")
    else:
        cur = None
        while rs:
            if cur is None:
                if len(rs) >= 3:
                    A(f"v_max3_u32 v{tmp}, v{rs[0]}, v{rs[1]}, v{rs[2]}"); rs = rs[3:]
                else:
                    A(f"v_max_u32 v{tmp}, v{rs[0]}, v{rs[1]}"); rs = rs[2:]
                cur = tmp
            elif len(rs) >= 2:
                A(f"v_max3_u32 v{tmp}, v{tmp}, v{rs[0]}, v{rs[1]}"); rs = rs[2:]
            else:
                A(f"v_max_u32 v{tmp}, v{tmp}, v{rs[0]}"); rs = rs[1:]
        A(f"v_cmp_eq_u32 vcc, -1, v{tmp}")
    A(f"s_cbranch_vccnz {l}")

DPP = " row_mask:0xf bank_mask:0xf"
def allreduce_rows(op, v, t):
    A(f"v_mov_b32 v{t}, v{v}")
    A(f"v_permlane16_swap_b32 v{v}, v{t}")
    A(f"{op} v{v}, v{v}, v{t}")
    A(f"v_mov_b32 v{t}, v{v}")
    A(f"v_permlane32_swap_b32 v{v}, v{t}")
    A(f"{op} v{v}, v{v}, v{t}")

def pack_pairs(base):
    for p in range(4):
        A(f"v_perm_b32 v3, v{base+4+p}, v{base+p}, s40")
        A(f"v_perm_b32 v{base+4+p}, v{base+4+p}, v{base+p}, s41")
        A(f"v_mov_b32 v{base+p}, v3")

hdr = open(f"cdna_kernels/{NAME}.s.ref").read().split("\n")
for line in hdr:
    if line.startswith("; @launch"):
        a.raw(f"; @launch grid=(256,1,1) block=(1024,1,1) lds={LDS_BYTES}")
        break
    a.raw(line)
a.raw('.amdgcn_target "amdgcn-amd-amdhsa--gfx950"')
a.raw(".text")
a.raw(f".globl {NAME}_kernel")
a.raw(".p2align 8")
a.raw(f".type {NAME}_kernel,@function")
a.raw(f"{NAME}_kernel:")

A("s_cmp_ge_u32 s2, 256")
A("s_cbranch_scc1 L_end")
A("s_load_dwordx16 s[4:19], s[0:1], 0")
A("s_load_dwordx8 s[20:27], s[0:1], 64")
A("s_and_b32 s28, s2, 7")
A("s_lshr_b32 s29, s2, 3")
A("s_and_b32 s32, s29, 15")
A("v_lshrrev_b32 v3, 6, v0")
A("v_readfirstlane_b32 s30, v3")
A("v_and_b32 v0, 63, v0")
A("v_and_b32 v1, 15, v0")
A("v_lshrrev_b32 v2, 4, v0")
A("s_mov_b32 s40, 0x05040100")
A("s_mov_b32 s41, 0x07060302")
A("s_mov_b32 s42, 0xfffffffe")
A(f"s_mov_b32 s44, {C_SCALE:#x}")
A("s_mov_b32 s45, 0xffff0000")
A("s_mov_b32 s31, 0")
A("v_mov_b32 v7, 0x3f803f80")
A("v_cmp_eq_u32 s[38:39], 1, v1")
A("v_cmp_eq_u32 s[46:47], 7, v1")
A("v_mov_b32 v28, -1"); A("v_mov_b32 v29, -1"); A("v_mov_b32 v30, -1"); A("v_mov_b32 v31, -1")
A("s_mul_i32 s33, s28, %d" % GSTRIDE)
A("s_lshl_b32 s52, s28, 11")
A("s_add_u32 s52, s52, %d" % INIT)
A("s_waitcnt lgkmcnt(0)")
A("s_add_u32 s34, s26, s33"); A("s_addc_u32 s35, s27, 0")
A("s_add_u32 s36, s26, s52"); A("s_addc_u32 s37, s27, 0")
A("s_mov_b32 s48, s20"); A("s_mov_b32 s49, s21"); A("s_mov_b32 s50, %d" % (1792*1024)); A("s_mov_b32 s51, 0x20000")
stamp(0, True)
A("v_lshlrev_b32 v6, 1, v1")
A("v_and_b32 v6, 8, v6")
A("v_lshl_add_u32 v6, v2, 4, v6")
A("v_lshlrev_b32 v5, 4, v0")

lskip = L("noinit")
A("s_cmp_lg_u32 s29, 0"); A(f"s_cbranch_scc1 {lskip}")
A("s_cmp_lg_u32 s30, 15"); A(f"s_cbranch_scc1 {lskip}")
A("global_store_dwordx4 v5, v[28:31], s[36:37] sc1")
A("s_mov_b64 exec, 0xff")
A("global_store_dwordx4 v5, v[28:31], s[36:37] offset:1024 sc1")
A("s_waitcnt vmcnt(0)")
A("s_mov_b64 exec, 1")
A("s_lshl_b32 s52, s28, 2")
A("v_mov_b32 v3, s52")
A("v_mov_b32 v4, 1")
A("global_store_dword v3, v4, s[24:25] sc1")
A("s_mov_b64 exec, -1")
a.label(lskip)

def kv_loads():
    A("s_lshl_b32 s52, s28, 23")
    A("s_lshl_b32 s53, s29, 15")
    A("s_add_u32 s52, s52, s53")
    A("s_lshl_b32 s53, s30, 13")
    A("s_add_u32 s52, s52, s53")
    A("s_add_u32 s52, s52, %d" % (28672*256 + 4096))
    A("s_add_u32 s54, s6, s52"); A("s_addc_u32 s55, s7, 0")
    A("s_add_u32 s56, s8, s52"); A("s_addc_u32 s57, s9, 0")
    A("v_lshlrev_b32 v3, 8, v1")
    A("v_lshl_add_u32 v3, v2, 4, v3")
    A("v_lshlrev_b32 v4, 4, v1")
    A("v_lshl_add_u32 v4, v2, 10, v4")
    for t in range(2):
        for s in range(4):
            rb = 32 + 16*t + 4*s
            A(f"global_load_dwordx4 v[{rb}:{rb+3}], v3, s[54:55] offset:{t*4096 + s*64 - 4096}")
    for i in range(8):
        rb = 96 + 4*i
        A(f"global_load_dwordx4 v[{rb}:{rb+3}], v4, s[56:57] offset:{(i&3)*256 + (i>>2)*4096 - 4096}")

def v_transpose():
    for c in range(4):
        for p in range(4):
            lo = 96 + 4*(2*p) + c; hi = 96 + 4*(2*p+1) + c
            A(f"v_perm_b32 v{64 + 4*(2*c) + p}, v{hi}, v{lo}, s40")
            A(f"v_perm_b32 v{64 + 4*(2*c+1) + p}, v{hi}, v{lo}, s41")

def handshake():
    A("s_lshl_b32 s52, s28, 2")
    A("v_mov_b32 v3, s52")
    l = L("f1")
    spin_head(l)
    A("global_load_dword v4, v3, s[24:25] sc1")
    A("s_waitcnt vmcnt(0)")
    A("v_cmp_eq_u32 vcc, 0, v4")
    A(f"s_cbranch_vccnz {l}")
    A("s_getreg_b32 s53, hwreg(HW_REG_XCC_ID)")
    A("s_and_b32 s53, s53, 0xff")
    A("s_lshl_b32 s52, s29, 2")
    A("s_add_u32 s52, s52, 1024")
    A("s_mov_b64 exec, 1")
    A("v_mov_b32 v3, s52")
    A("v_mov_b32 v4, s53")
    A("global_store_dword v3, v4, s[36:37] sc1")
    A("s_mov_b32 exec_lo, -1"); A("s_mov_b32 exec_hi, 0")
    A("v_lshlrev_b32 v3, 2, v0")
    poll(["global_load_dword v4, v3, s[36:37] offset:1024 sc1"], [4], 3)
    A("v_cmp_ne_u32 vcc, s53, v4")
    A("s_cmp_eq_u64 vcc, 0")
    A("s_cselect_b32 s52, 1, 0")
    A("s_mov_b64 exec, -1")
    A("v_mov_b32 v3, %d" % L_MODE)
    A("v_mov_b32 v4, s52")
    A("ds_write_b32 v3, v4")
    A("s_waitcnt lgkmcnt(0)")

def xg_phase(src, wbase, lpq, T):
    F = T
    G = T+4
    D1, D2, D3 = T+8, T+12, T+16
    if src != 'x0':
        A("v_and_b32 v3, 3, v1")
        A("v_lshrrev_b32 v4, 3, v1")
        A("v_lshl_add_u32 v3, v4, 2, v3")
        A("s_mov_b32 s52, %d" % GSTRIDE)
        A("v_mul_lo_u32 v3, v3, s52")
        A("v_lshl_add_u32 v3, v6, 1, v3")
        A("s_lshl_b32 s52, s30, 7")
        A("s_add_u32 s52, s52, %d" % src)
        A("v_add_u32 v3, s52, v3")
        poll([f"global_load_dwordx4 v[{G}:{G+3}], v3, s[26:27] sc1"], range(G, G+4), 4)
        for pat in ("quad_perm:[1,0,3,2]", "quad_perm:[2,3,0,1]", "row_ror:8"):
            for i in range(4):
                A(f"v_add_f32_dpp v{G+i}, v{G+i}, v{G+i} {pat}{DPP}")
        A(f"v_cvt_pk_bf16_f32 v{F}, v{G}, v{G+1}")
        A(f"v_cvt_pk_bf16_f32 v{F+1}, v{G+2}, v{G+3}")
        A(f"v_lshlrev_b32 v{G}, 16, v{F}")
        A(f"v_and_b32 v{G+1}, s45, v{F}")
        A(f"v_lshlrev_b32 v{G+2}, 16, v{F+1}")
        A(f"v_and_b32 v{G+3}, s45, v{F+1}")
        for i in range(4):
            A(f"v_add_f32 v{24+i}, v{24+i}, v{G+i}")
        A(f"v_cvt_pk_bf16_f32 v{F}, v24, v25")
        A(f"v_cvt_pk_bf16_f32 v{F+1}, v26, v27")
        A(f"v_mov_b32_dpp v{F+2}, v{F} row_half_mirror{DPP}")
        A(f"v_mov_b32_dpp v{F+3}, v{F+1} row_half_mirror{DPP}")
    A(f"v_lshlrev_b32 v24, 16, v{F}")
    A(f"v_and_b32 v25, s45, v{F}")
    A(f"v_lshlrev_b32 v26, 16, v{F+1}")
    A(f"v_and_b32 v27, s45, v{F+1}")
    if wbase is None:
        return
    for i in range(4):
        A(f"v_cndmask_b32 v{G+i}, v{F+i}, v7, s[38:39]")
    A(f"v_mfma_f32_16x16x32_bf16 v[{D1}:{D1+3}], v[{G}:{G+3}], v[{wbase}:{wbase+3}], 0")
    A(f"v_mfma_f32_16x16x32_bf16 v[{D2}:{D2+3}], v[{G}:{G+3}], v[{wbase+4}:{wbase+7}], 0")
    A(f"v_mfma_f32_16x16x32_bf16 v[{D3}:{D3+3}], v[{G}:{G+3}], v[{G}:{G+3}], 0")
    A("s_lshl_b32 s52, s30, 8")
    A("s_add_u32 s52, s52, %d" % lpq)
    A("v_lshl_add_u32 v3, v1, 3, s52")
    A("s_lshl_b32 s52, s30, 6")
    A("s_add_u32 s52, s52, %d" % (lpq+4096))
    A("v_lshl_add_u32 v4, v1, 2, s52")
    A("s_mov_b64 exec, 0xffff")
    A(f"ds_write_b64 v3, v[{D1}:{D1+1}]")
    A(f"ds_write_b64 v3, v[{D2}:{D2+1}] offset:128")
    A(f"ds_write_b32 v4, v{D3}")
    A("s_mov_b64 exec, -1")
    A("s_waitcnt lgkmcnt(0)")
    A("s_barrier")

def final_ln(lpq, T):
    R = T+2
    S = T+18
    A("v_and_b32 v3, 31, v0")
    A("v_lshlrev_b32 v3, 3, v3")
    A("v_lshrrev_b32 v4, 5, v0")
    A("v_lshl_add_u32 v3, v4, 11, v3")
    A("v_add_u32 v3, %d, v3" % lpq)
    A("v_lshlrev_b32 v4, 6, v1")
    A("v_add_u32 v4, %d, v4" % (lpq+4096))
    A(f"ds_read_b64 v[{S}:{S+1}], v4")
    for k in range(4):
        A(f"ds_read2_b64 v[{R+4*k}:{R+4*k+3}], v3 offset0:{64*k} offset1:{64*k+32}")
    A("s_waitcnt lgkmcnt(4)")
    for pat in ("quad_perm:[1,0,3,2]", "quad_perm:[2,3,0,1]", "row_half_mirror", "row_mirror"):
        for i in range(2):
            A(f"v_add_f32_dpp v{S+i}, v{S+i}, v{S+i} {pat}{DPP}")
    A(f"v_mul_f32 v{S+1}, 0x3b000000, v{S+1}")
    A(f"v_mul_f32 v{S}, 0x3b000000, v{S}")
    A(f"v_fma_f32 v{S}, -v{S+1}, v{S+1}, v{S}")
    A(f"v_max_f32 v{S}, 0, v{S}")
    A(f"v_cvt_pk_bf16_f32 v4, v{S+1}, v{S}")
    A(f"v_lshlrev_b32 v{S+1}, 16, v4")
    A(f"v_and_b32 v{S}, s45, v4")
    A(f"v_add_f32 v{S}, 0x3727c5ac, v{S}")
    A(f"v_cvt_pk_bf16_f32 v4, v{S}, v{S}")
    A(f"v_lshlrev_b32 v{S}, 16, v4")
    A(f"v_sqrt_f32 v{S}, v{S}")
    A(f"v_cvt_pk_bf16_f32 v4, v{S}, v{S}")
    A(f"v_lshlrev_b32 v{S}, 16, v4")
    A(f"v_rcp_f32 v{S}, v{S}")
    A("s_waitcnt lgkmcnt(0)")
    for k in range(4):
        A(f"v_pk_add_f32 v[{R+4*k}:{R+4*k+1}], v[{R+4*k}:{R+4*k+1}], v[{R+4*k+2}:{R+4*k+3}]")
    A(f"v_pk_add_f32 v[{R}:{R+1}], v[{R}:{R+1}], v[{R+4}:{R+5}]")
    A(f"v_pk_add_f32 v[{R+8}:{R+9}], v[{R+8}:{R+9}], v[{R+12}:{R+13}]")
    A(f"v_pk_add_f32 v[{R}:{R+1}], v[{R}:{R+1}], v[{R+8}:{R+9}]")
    A(f"v_mov_b32 v{R+2}, v{R}")
    A(f"v_mov_b32 v{R+3}, v{R+1}")
    A(f"v_permlane32_swap_b32 v{R}, v{R+2}")
    A(f"v_permlane32_swap_b32 v{R+1}, v{R+3}")
    A(f"v_pk_add_f32 v[{R}:{R+1}], v[{R}:{R+1}], v[{R+2}:{R+3}]")
    A(f"v_fma_f32 v{T}, -v{S+1}, v{R+1}, v{R}")
    A(f"v_mul_f32 v{T}, v{T}, v{S}")

def pack16(v, t):
    A(f"v_mov_b32 v{t}, v{v}")
    A(f"v_permlane16_swap_b32 v{v}, v{t}")
    A(f"v_cvt_pk_bf16_f32 v{v}, v{v}, v{t}")
    A(f"v_min_u32 v{v}, s42, v{v}")

def att_phase(layer):
    if layer == 0:
        A("s_lshl_b32 s52, s28, 2")
        A("v_mov_b32 v3, s52")
        l = L("f1a")
        spin_head(l)
        A("global_load_dword v4, v3, s[24:25] sc1")
        A("s_waitcnt vmcnt(0)")
        A("v_cmp_eq_u32 vcc, 0, v4")
        A(f"s_cbranch_vccnz {l}")
        v_transpose()
        qb, qoff = "s[36:37]", 0
    else:
        qb, qoff = "s[34:35]", LSTRIDE + OFF_Q
    A("v_and_b32 v3, 3, v1")
    A("v_lshlrev_b32 v3, 8, v3")
    A("v_lshl_add_u32 v3, v2, 4, v3")
    if qoff: A("v_add_u32 v3, %d, v3" % qoff)
    poll([f"global_load_dwordx4 v[{104+4*s}:{107+4*s}], v3, {qb} offset:{64*s} sc1" for s in range(4)], range(104,120), 4)
    if layer == 0:
        ls = L("nof2")
        A("s_add_u32 s52, s29, s30")
        A("s_cmp_lg_u32 s52, 0"); A(f"s_cbranch_scc1 {ls}")
        A("s_lshl_b32 s52, s28, 2")
        A("s_add_u32 s52, s52, 32")
        A("s_mov_b64 exec, 1")
        A("v_mov_b32 v3, s52"); A("v_mov_b32 v4, 1")
        A("global_store_dword v3, v4, s[24:25] sc1")
        A("s_mov_b64 exec, -1")
        a.label(ls)
    for s in range(4):
        for t in range(2):
            kb = 32 + 16*t + 4*s
            c = "0" if s == 0 else f"v[{96+4*t}:{99+4*t}]"
            A(f"v_mfma_f32_16x16x32_bf16 v[{96+4*t}:{99+4*t}], v[{kb}:{kb+3}], v[{104+4*s}:{107+4*s}], {c}")
    A("v_max3_f32 v3, v96, v97, v98")
    A("v_max3_f32 v3, v3, v99, v100")
    A("v_max3_f32 v3, v3, v101, v102")
    A("v_max_f32 v3, v3, v103")
    allreduce_rows("v_max_f32", 3, 4)
    A("v_mul_f32 v3, s44, v3")
    for i in range(8):
        A(f"v_fma_f32 v{96+i}, v{96+i}, s44, -v3")
    for i in range(8):
        A(f"v_exp_f32 v{96+i}, v{96+i}")
    for p in range(4):
        A(f"v_cvt_pk_bf16_f32 v{28+p}, v{96+2*p}, v{97+2*p}")
    A("v_add_f32 v4, v96, v97"); A("v_add_f32 v5, v98, v99")
    A("v_add_f32 v4, v4, v100"); A("v_add_f32 v5, v5, v101")
    A("v_add_f32 v4, v4, v102"); A("v_add_f32 v5, v5, v103")
    A("v_add_f32 v4, v4, v5")
    for e in range(8):
        A(f"v_mfma_f32_16x16x32_bf16 v[{96+4*e}:{99+4*e}], v[{64+4*e}:{67+4*e}], v[28:31], 0")
    allreduce_rows("v_add_f32", 4, 5)
    A("s_mul_i32 s52, s30, 2176")
    A("s_add_u32 s52, s52, %d" % L_AO)
    A("v_lshl_add_u32 v5, v2, 2, v1")
    A("v_lshl_add_u32 v5, v5, 4, s52")
    A("s_lshl_b32 s52, s30, 2")
    A("s_add_u32 s52, s52, %d" % L_AM)
    A("v_lshl_add_u32 v28, v1, 4, s52")
    A("s_mov_b64 exec, 0xf")
    A("ds_write2_b32 v28, v3, v4 offset0:0 offset1:16")
    A("s_mov_b32 s52, 0x000f000f")
    A("s_mov_b32 s53, 0x000f000f")
    A("s_mov_b64 exec, s[52:53]")
    for e in range(8):
        A(f"ds_write_b128 v5, v[{96+4*e}:{99+4*e}] offset:{272*e}")
    A("s_mov_b64 exec, -1")
    A("v_lshlrev_b32 v5, 4, v0")
    A("s_waitcnt lgkmcnt(0)")

def combine_phase(layer):
    lo = layer*LSTRIDE
    A("s_sub_u32 s52, s30, 4")
    A("s_lshr_b32 s53, s52, 1")
    A("s_and_b32 s52, s52, 1")
    A("s_lshl_b32 s52, s52, 6")
    A("v_add_u32 v96, s52, v0")
    A("v_and_b32 v97, 7, v96")
    A("v_mul_u32_u24 v97, 272, v97")
    A("v_lshrrev_b32 v98, 5, v96")
    A("v_lshl_add_u32 v97, v98, 6, v97")
    A("v_bfe_u32 v98, v96, 3, 2")
    A("v_lshl_add_u32 v97, v98, 2, v97")
    A("s_lshl_b32 s54, s53, 4")
    A("s_add_u32 s55, s54, %d" % L_AO)
    A("v_add_u32 v97, s55, v97")
    A("s_add_u32 s55, s54, %d" % L_AM)
    A("v_mov_b32 v98, s55")
    A("ds_read_b128 v[100:103], v98")
    A("ds_read_b128 v[104:107], v98 offset:64")
    for k in range(4):
        A(f"ds_read_b32 v{108+k}, v97 offset:{2176*k}")
    A("v_lshrrev_b32 v98, 4, v96")
    A("v_lshlrev_b32 v98, 11, v98")
    A("v_and_b32 v99, 15, v96")
    A("v_lshl_add_u32 v98, v99, 2, v98")
    A("s_lshl_b32 s54, s53, 14")
    A("s_lshl_b32 s55, s29, 6")
    A("s_add_u32 s54, s54, s55")
    A("s_add_u32 s54, s54, %d" % (lo + OFF_P))
    A("v_add_u32 v98, s54, v98")
    A("s_waitcnt lgkmcnt(5)")
    A("v_max3_f32 v112, v100, v101, v102")
    A("v_max_f32 v112, v112, v103")
    for k in range(4):
        A(f"v_sub_f32 v{100+k}, v{100+k}, v112")
    for k in range(4):
        A(f"v_exp_f32 v{100+k}, v{100+k}")
    A("s_waitcnt lgkmcnt(0)")
    A("v_mul_f32 v114, v100, v108")
    A("v_mul_f32 v113, v100, v104")
    for k in range(1,4):
        A(f"v_fmac_f32 v114, v{100+k}, v{108+k}")
        A(f"v_fmac_f32 v113, v{100+k}, v{104+k}")
    A("v_min_u32 v114, s42, v114")
    A("v_min_u32 v112, s42, v112")
    A("v_min_u32 v113, s42, v113")
    store_mode("global_store_dword v98, v114, s[34:35]")
    ls = L("noml")
    A("s_cmp_lg_u32 s52, 0"); A(f"s_cbranch_scc1 {ls}")
    A("s_lshl_b32 s54, s53, 8")
    A("s_lshl_b32 s55, s29, 3")
    A("s_add_u32 s54, s54, s55")
    A("s_add_u32 s54, s54, %d" % (lo + OFF_ML))
    A("s_mov_b64 exec, 1")
    A("v_mov_b32 v98, s54")
    store_mode("global_store_dwordx2 v98, v[112:113], s[34:35]")
    A("s_mov_b64 exec, -1")
    a.label(ls)

def red_phase(layer):
    lo = layer*LSTRIDE
    A("s_lshl_b32 s52, s29, 11")
    A("s_add_u32 s52, s52, %d" % (lo + OFF_P))
    A("v_add_u32 v3, s52, v5")
    A("s_lshr_b32 s52, s29, 3")
    A("s_lshl_b32 s52, s52, 8")
    A("s_add_u32 s52, s52, %d" % (lo + OFF_ML))
    A("v_lshrrev_b32 v4, 2, v0")
    A("v_lshl_add_u32 v4, v4, 3, s52")
    poll(["global_load_dwordx2 v[104:105], v4, s[34:35] sc1",
          "global_load_dwordx2 v[106:107], v4, s[34:35] offset:128 sc1",
          "global_load_dwordx4 v[96:99], v3, s[34:35] sc1",
          "global_load_dwordx4 v[100:103], v3, s[34:35] offset:1024 sc1"], range(96,108), 108)
    A("v_max_f32 v108, v104, v106")
    A(f"v_max_f32_dpp v108, v108, v108 row_half_mirror{DPP}")
    A(f"v_max_f32_dpp v108, v108, v108 row_mirror{DPP}")
    allreduce_rows("v_max_f32", 108, 109)
    A("v_sub_f32 v104, v104, v108")
    A("v_sub_f32 v106, v106, v108")
    A("v_exp_f32 v104, v104")
    A("v_exp_f32 v106, v106")
    for i in range(4):
        A(f"v_mul_f32 v{96+i}, v104, v{96+i}")
    A("v_mul_f32 v110, v104, v105")
    for i in range(4):
        A(f"v_fmac_f32 v{96+i}, v106, v{100+i}")
    A("v_fmac_f32 v110, v106, v107")
    A("v_mov_b32 v100, v110")
    for pat in ("row_ror:4", "row_ror:8"):
        for i in range(5):
            A(f"v_add_f32_dpp v{96+i}, v{96+i}, v{96+i} {pat}{DPP}")
    for sw in ("v_permlane16_swap_b32", "v_permlane32_swap_b32"):
        for i in range(5):
            A(f"v_mov_b32 v{104+i}, v{96+i}")
        for i in range(5):
            A(f"{sw} v{96+i}, v{104+i}")
        for i in range(5):
            A(f"v_add_f32 v{96+i}, v{96+i}, v{104+i}")
    A("v_rcp_f32 v100, v100")
    for i in range(4):
        A(f"v_mul_f32 v{96+i}, v{96+i}, v100")
    A("v_cvt_pk_bf16_f32 v96, v96, v97")
    A("v_cvt_pk_bf16_f32 v97, v98, v99")
    A("v_min_u32 v96, s42, v96")
    A("v_min_u32 v97, s42, v97")
    A("s_lshl_b32 s52, s29, 5")
    A("s_add_u32 s52, s52, %d" % (lo + OFF_O))
    A("v_lshl_add_u32 v3, v0, 3, s52")
    A("s_mov_b64 exec, 0xf")
    store_mode("global_store_dwordx2 v3, v[96:97], s[34:35]")
    A("s_mov_b64 exec, -1")

def w_gemv(src_off, wbase, lpq, nw):
    ls = L("wskip")
    if nw < 16:
        A(f"s_cmp_ge_u32 s30, {nw}"); A(f"s_cbranch_scc1 {ls}")
    A("s_lshl_b32 s52, s30, 6")
    A("s_add_u32 s52, s52, %d" % src_off)
    A("v_lshl_add_u32 v3, v2, 4, s52")
    poll(["global_load_dwordx4 v[96:99], v3, s[34:35] sc1"], range(96,100), 4)
    A(f"v_mfma_f32_16x16x32_bf16 v[100:103], v[96:99], v[{wbase}:{wbase+3}], 0")
    A(f"v_mfma_f32_16x16x32_bf16 v[104:107], v[96:99], v[{wbase+4}:{wbase+7}], 0")
    A("s_lshl_b32 s52, s30, 7")
    A("s_add_u32 s52, s52, %d" % lpq)
    A("v_lshl_add_u32 v3, v1, 3, s52")
    A("s_mov_b64 exec, 0xffff")
    A("ds_write2_b32 v3, v100, v104 offset0:0 offset1:1")
    A("s_mov_b64 exec, -1")
    A("s_waitcnt lgkmcnt(0)")
    a.label(ls)
    A("s_barrier")

def w_final(dst_off, lpq, nw):
    half = nw//2
    A("v_and_b32 v3, 31, v0")
    A("v_lshlrev_b32 v3, 2, v3")
    A("v_lshrrev_b32 v4, 5, v0")
    A(f"v_mul_u32_u24 v4, {half*128}, v4")
    A("v_add3_u32 v4, v3, v4, %d" % 0)
    A("v_add_u32 v4, %d, v4" % lpq)
    for k in range(half//2):
        A(f"ds_read2_b32 v[{96+2*k}:{97+2*k}], v4 offset0:{64*k} offset1:{64*k+32}")
    A("s_lshl_b32 s52, s32, 7")
    A("s_add_u32 s52, s52, %d" % dst_off)
    A("v_add_u32 v3, s52, v3")
    A("s_waitcnt lgkmcnt(0)")
    n = half
    regs = list(range(96, 96+n))
    while len(regs) > 1:
        nr = []
        for k in range(0, len(regs), 2):
            A(f"v_add_f32 v{regs[k]}, v{regs[k]}, v{regs[k+1]}")
            nr.append(regs[k])
        regs = nr
    A("v_mov_b32 v97, v96")
    A("v_permlane32_swap_b32 v96, v97")
    A("v_add_f32 v96, v96, v97")
    A("v_min_u32 v96, s42, v96")
    A("s_mov_b32 exec_lo, -1"); A("s_mov_b32 exec_hi, 0")
    A("global_store_dword v3, v96, s[34:35] sc1")
    A("s_mov_b64 exec, -1")

def read_mode():
    A("v_mov_b32 v3, %d" % L_MODE)
    A("ds_read_b32 v3, v3")
    A("s_waitcnt lgkmcnt(0)")
    A("v_readfirstlane_b32 s31, v3")

def wave_is(lo, hi):
    ls = L("wv")
    if lo > 0:
        A(f"s_cmp_lt_u32 s30, {lo}"); A(f"s_cbranch_scc1 {ls}")
    if hi < 16:
        A(f"s_cmp_ge_u32 s30, {hi}"); A(f"s_cbranch_scc1 {ls}")
    return ls

def attention_block(layer):
    ls = wave_is(0, 4)
    att_phase(layer)
    a.label(ls)
    if layer == 0:
        ls = wave_is(15, 16)
        handshake()
        a.label(ls)
    A("s_barrier")
    stamp(4 + 10*layer, True)
    if layer == 0:
        read_mode()
    ls = wave_is(4, 12)
    combine_phase(layer)
    a.label(ls)
    ls = wave_is(12, 13)
    red_phase(layer)
    stamp(5 + 10*layer)
    a.label(ls)

A("s_cmp_ge_u32 s29, 16")
A("s_cbranch_scc1 L_wrole")

A("s_lshl_b32 s52, s30, 6")
A("v_add_u32 v3, s52, v6")
A("v_xor_b32 v4, 8, v3")
A("global_load_dwordx2 v[64:65], v3, s[4:5]")
A("global_load_dwordx2 v[66:67], v4, s[4:5]")
A("s_lshl_b32 s52, s30, 18")
A("s_lshl_b32 s53, s28, 10"); A("s_add_u32 s52, s52, s53")
A("s_lshl_b32 s53, s32, 6"); A("s_add_u32 s52, s52, s53")
A("s_add_u32 s54, s10, s52"); A("s_addc_u32 s55, s11, 0")
A("v_lshlrev_b32 v3, 2, v1")
A("v_lshl_add_u32 v3, v2, 16, v3")
for i in range(8):
    A(f"global_load_dword v{8 + (i>>1) + 4*(i&1)}, v3, s[54:55]")
    if i < 7:
        A("s_add_u32 s54, s54, 8192"); A("s_addc_u32 s55, s55, 0")
ls = wave_is(0, 9)
A("s_mul_i32 s52, s32, 9216")
A("s_lshl_b32 s53, s30, 10"); A("s_add_u32 s52, s52, s53")
A("v_add_u32 v3, s52, v5")
A("global_store_dwordx4 v3, v[28:31], s[34:35] sc1")
a.label(ls)
lkv = L("xkv"); lkv2 = L("xkv")
A("s_cmp_ge_u32 s30, 4"); A(f"s_cbranch_scc1 {lkv}")
kv_loads()
A("s_waitcnt vmcnt(16)")
A(f"s_branch {lkv2}")
a.label(lkv)
A("s_waitcnt vmcnt(0)")
a.label(lkv2)
stamp(1, True)
pack_pairs(8)
xg_phase('x0', 8, L_PQ[0], 64)
stamp(2, True)
A("s_mul_i32 s52, s30, 114688")
A("s_mul_i32 s53, s28, 448"); A("s_add_u32 s52, s52, s53")
A("s_mul_i32 s53, s32, 28"); A("s_add_u32 s52, s52, s53")
A("s_add_u32 s54, s16, s52"); A("s_addc_u32 s55, s17, 0")
A("s_add_u32 s56, s18, s52"); A("s_addc_u32 s57, s19, 0")
A("v_and_b32 v3, 7, v1")
A("v_min_u32 v3, 6, v3")
A("v_lshlrev_b32 v3, 2, v3")
A("v_mul_u32_u24 v4, 28672, v2")
A("v_add_u32 v3, v3, v4")
A("s_mov_b32 s58, 0x00ff00ff"); A("s_mov_b32 s59, 0x00ff00ff")
for i in range(8):
    A("s_mov_b64 exec, s[58:59]")
    A(f"global_load_dword v{16 + (i>>1) + 4*(i&1)}, v3, s[54:55]")
    A("s_not_b64 exec, s[58:59]")
    A(f"global_load_dword v{16 + (i>>1) + 4*(i&1)}, v3, s[56:57]")
    if i < 7:
        A("s_add_u32 s54, s54, 3584"); A("s_addc_u32 s55, s55, 0")
        A("s_add_u32 s56, s56, 3584"); A("s_addc_u32 s57, s57, 0")
A("s_mov_b64 exec, -1")

for layer in range(2):
    lo = layer*LSTRIDE
    if layer == 1:
        xg_phase(OFF_XB, 8, L_PQ[2], 96)
        stamp(12, True)
    ls = wave_is(8, 9)
    final_ln(L_PQ[2*layer], 96)
    pack16(96, 97)
    if layer == 0:
        A("s_lshl_b32 s52, s28, 2")
        A("v_mov_b32 v3, s52")
        l = L("f1q")
        spin_head(l)
        A("global_load_dword v4, v3, s[24:25] sc1")
        A("s_waitcnt vmcnt(0)")
        A("v_cmp_eq_u32 vcc, 0, v4")
        A(f"s_cbranch_vccnz {l}")
        A("s_lshl_b32 s52, s32, 6")
        A("v_lshl_add_u32 v3, v1, 2, s52")
        A("s_mov_b64 exec, 0xffff")
        A("global_store_dword v3, v96, s[36:37] sc1")
        A("s_mov_b64 exec, -1")
    else:
        A("s_lshl_b32 s52, s32, 6")
        A("s_add_u32 s52, s52, %d" % (lo + OFF_Q))
        A("v_lshl_add_u32 v3, v1, 2, s52")
        A("s_mov_b64 exec, 0xffff")
        store_mode("global_store_dword v3, v96, s[34:35]")
        A("s_mov_b64 exec, -1")
    stamp(3 + 10*layer)
    a.label(ls)
    attention_block(layer)
    if layer == 0:
        A("s_waitcnt vmcnt(0)")
        pack_pairs(16)
        A("v_lshlrev_b32 v3, 2, v0")
        A("s_mov_b64 exec, 0xff")
        l = L("f2")
        spin_head(l)
        A("global_load_dword v4, v3, s[24:25] offset:32 sc1")
        A("s_waitcnt vmcnt(0)")
        A("v_cmp_eq_u32 vcc, 0, v4")
        A(f"s_cbranch_vccnz {l}")
        A("s_mov_b64 exec, -1")
    xg_phase(lo + OFF_XA, 16, L_PQ[2*layer+1], 96)
    stamp(7 + 10*layer, True)
    ls = wave_is(8, 9)
    final_ln(L_PQ[2*layer+1], 96)
    A("v_cvt_pk_bf16_f32 v96, v96, v96")
    A("v_lshlrev_b32 v96, 16, v96")
    A(f"v_mov_b32_dpp v97, v96 row_shl:8{DPP} bound_ctrl:0")
    A(f"v_mul_f32 v98, {LOG2E ^ 0x80000000:#x}, v96")
    A("v_exp_f32 v98, v98")
    A("v_add_f32 v98, 1.0, v98")
    A("v_rcp_f32 v98, v98")
    A("v_cvt_pk_bf16_f32 v98, v98, v98")
    A("v_lshlrev_b32 v98, 16, v98")
    A("v_mul_f32 v96, v98, v97")
    A("v_cndmask_b32 v96, v96, 0, s[46:47]")
    pack16(96, 97)
    A("s_lshl_b32 s52, s32, 5")
    A("s_add_u32 s52, s52, %d" % (lo + OFF_H))
    A("v_lshl_add_u32 v3, v1, 2, s52")
    A("s_mov_b64 exec, 0xff")
    store_mode("global_store_dword v3, v96, s[34:35]")
    A("s_mov_b64 exec, -1")
    stamp(8 + 10*layer)
    a.label(ls)
A("s_cmp_lg_u32 s2, 0")
A("s_cbranch_scc1 L_end")
xg_phase(LSTRIDE + OFF_XB, None, None, 96)
A("s_lshl_b32 s52, s30, 6")
A("v_add_u32 v3, s52, v6")
A("s_mov_b32 s52, 0x00110011"); A("s_mov_b32 s53, 0x00110011")
A("s_mov_b64 exec, s[52:53]")
A("global_store_dwordx2 v3, v[96:97], s[22:23]")
A("s_mov_b64 exec, -1")
stamp(20, True)
A("s_branch L_end")

a.label("L_wrole")
ls = wave_is(0, 4)
kv_loads()
a.label(ls)
A("s_lshl_b32 s52, s28, 19")
A("s_lshl_b32 s53, s30, 15"); A("s_add_u32 s52, s52, s53")
A("s_lshl_b32 s53, s32, 6"); A("s_add_u32 s52, s52, s53")
A("s_add_u32 s52, s52, 4096")
A("s_add_u32 s54, s12, s52"); A("s_addc_u32 s55, s13, 0")
A("v_lshlrev_b32 v3, 2, v1")
A("v_lshl_add_u32 v3, v2, 13, v3")
for i in range(8):
    A(f"global_load_dword v{8 + (i>>1) + 4*(i&1)}, v3, s[54:55] offset:{i*1024-4096}")
ls = wave_is(0, 8)
A("s_mul_i32 s52, s28, 224")
A("s_mul_i32 s53, s30, 28"); A("s_add_u32 s52, s52, s53")
A("s_lshl_b32 s52, s52, 10")
A("s_lshl_b32 s53, s32, 6"); A("s_add_u32 s52, s52, s53")
A("v_lshrrev_b32 v3, 1, v2")
A("v_mul_u32_u24 v3, 14, v3")
A("v_and_b32 v4, 1, v2")
A("v_lshl_add_u32 v3, v4, 3, v3")
A("v_lshlrev_b32 v3, 10, v3")
A("v_lshl_add_u32 v3, v1, 2, v3")
A("v_add_u32 v4, 4096, v3")
for i in range(8):
    A(f"buffer_load_dword v{16 + (i>>1) + 4*(i&1)}, v{3 + (i>>2)}, s[48:51], s52 offen offset:{(i&3)*1024}")
a.label(ls)
for layer in range(2):
    lo = layer*LSTRIDE
    attention_block(layer)
    if layer == 0:
        A("s_waitcnt vmcnt(0)")
        pack_pairs(8)
        pack_pairs(16)
    w_gemv(lo + OFF_O, 8, L_PQ[2*layer], 16)
    ls = wave_is(8, 9)
    w_final(lo + OFF_XA, L_PQ[2*layer], 16)
    stamp(6 + 10*layer)
    a.label(ls)
    w_gemv(lo + OFF_H, 16, L_PQ[2*layer+1], 8)
    ls = wave_is(8, 9)
    w_final(lo + OFF_XB, L_PQ[2*layer+1], 8)
    stamp(9 + 10*layer)
    a.label(ls)
a.label("L_end")
A("s_endpgm")
a.raw('.section .rodata,"a"')
a.raw(".p2align 6")
a.raw(f".amdhsa_kernel {NAME}_kernel")
a.raw("  .amdhsa_next_free_vgpr 128")
a.raw("  .amdhsa_next_free_sgpr 96")
a.raw("  .amdhsa_accum_offset 128")
a.raw("  .amdhsa_group_segment_fixed_size 0")
a.raw("  .amdhsa_kernarg_size 96")
a.raw("  .amdhsa_user_sgpr_count 2")
a.raw("  .amdhsa_user_sgpr_kernarg_segment_ptr 1")
a.raw("  .amdhsa_system_sgpr_workgroup_id_x 1")
a.raw(".end_amdhsa_kernel")
out = [x for x in sys.argv[1:] if not x.startswith("--")]
open(out[0] if out else f"cdna_kernels/{NAME}.s", "w").write(a.text())
```

```python
import re

TRANS = ("v_exp_f32","v_log_f32","v_rcp_f32","v_rsq_f32","v_sqrt_f32","v_sin_f32","v_cos_f32")

def parse_regs(tok):
    tok = tok.strip()
    tok = tok.lstrip('-')
    m = re.fullmatch(r'(?:abs\()?([vsa])(\d+)\)?', tok)
    if m: return [(m.group(1), int(m.group(2)))]
    m = re.fullmatch(r'([vsa])\[(\d+):(\d+)\]', tok)
    if m: return [(m.group(1), i) for i in range(int(m.group(2)), int(m.group(3))+1)]
    if tok == 'vcc': return [('s', 106), ('s', 107)]
    if tok == 'exec': return [('s', 126), ('s', 127)]
    return []

class Asm:
    def __init__(self):
        self.lines = []
        self.hist = []
    def raw(self, text):
        self.lines.append(text)
    def comment(self, text):
        self.lines.append("    ; " + text)
    def label(self, name):
        self.lines.append(name + ":")
    def nop(self, n):
        while n > 0:
            k = min(n, 16)
            self.lines.append(f"    s_nop {k-1}")
            self.hist.append(dict(kind='nop', w=set(), r=set(), states=k))
            n -= k
    def _dist(self, pred):
        d = 0
        for h in reversed(self.hist):
            if pred(h): return d
            d += h['states']
            if d > 40: break
        return 1000
    def __call__(self, text):
        text = text.strip()
        code = text.split(';')[0].strip()
        parts = code.split(None, 1)
        op = parts[0]
        ops = []
        mods = ''
        if len(parts) > 1:
            toks = [t.strip().split()[0] if t.strip() else '' for t in parts[1].split(',')]
            ops = toks
        is_dpp = ('_dpp' in op) or ('row_' in code) or ('quad_perm' in code)
        kind = 'other'
        w = set(); r = set()
        if op.startswith('v_mfma'):
            kind = 'mfma'
            w = set(parse_regs(ops[0]));
            ab = set(parse_regs(ops[1])) | set(parse_regs(ops[2])); c = set(parse_regs(ops[3]))
            r = ab | c
        elif op.startswith('v_permlane'):
            kind = 'permlane'; w = set(parse_regs(ops[0])) | set(parse_regs(ops[1])); r = set(w)
        elif op.startswith('v_readfirstlane') or op.startswith('v_readlane'):
            kind = 'readlane'; w = set(parse_regs(ops[0])); r = set(x for o in ops[1:] for x in parse_regs(o))
        elif op.startswith('v_cmp'):
            kind = 'valu'; w = set(parse_regs(ops[0])); r = set(x for o in ops[1:] for x in parse_regs(o))
        elif op.startswith('v_'):
            kind = 'trans' if op.replace('_e32','').replace('_e64','') in TRANS else 'valu'
            w = set(parse_regs(ops[0])); r = set(x for o in ops[1:] for x in parse_regs(o))
            if op.startswith('v_fmac') or op.startswith('v_pk_fmac'): r |= w
            if is_dpp: r |= w
            if op.startswith('v_add_co') or op.startswith('v_addc_co'):
                w |= set(parse_regs(ops[1]))
        elif op.startswith('global_load') or op.startswith('buffer_load') or op.startswith('ds_read') or op.startswith('ds_bpermute') or op.startswith('ds_swizzle'):
            kind = 'vmem' if not op.startswith('ds_') else 'ds'
            w = set(parse_regs(ops[0])); r = set(x for o in ops[1:] for x in parse_regs(o))
        elif op.startswith('global_store') or op.startswith('buffer_store') or op.startswith('ds_write') or op.startswith('global_atomic') or op.startswith('ds_add'):
            kind = 'vmem' if not op.startswith('ds_') else 'ds'
            r = set(x for o in ops for x in parse_regs(o))
        elif op.startswith('s_'):
            kind = 'salu'
            if op in ('s_waitcnt','s_barrier','s_branch','s_endpgm','s_sleep','s_setprio') or op.startswith('s_cbranch') or op.startswith('s_cmp'):
                r = set(x for o in ops for x in parse_regs(o))
            else:
                w = set(parse_regs(ops[0])) if ops else set(); r = set(x for o in ops[1:] for x in parse_regs(o))
        need = 0
        vr = {x for x in r if x[0] in 'va'}; vw = {x for x in w if x[0] in 'va'}
        sr = {x for x in r if x[0]=='s'}
        valu_like = ('valu','trans','permlane','readlane')
        def req(n, pred):
            nonlocal need
            d = self._dist(pred)
            if d < n: need = max(need, n-d)
        if kind == 'mfma':
            req(8, lambda h: h['kind']=='mfma' and (h['w'] & ab))
            req(6, lambda h: h['kind']=='mfma' and (h['w'] & c) and h['w'] != c)
            req(2, lambda h: h['kind'] in valu_like and (h['w'] & r))
            req(8, lambda h: h['kind']=='mfma' and (h['w'] & w) and h['w'] != c)
        else:
            if vr or vw:
                req(8, lambda h: h['kind']=='mfma' and (h['w'] & (vr|vw)))
            if kind in valu_like and vw:
                req(3, lambda h: h['kind']=='mfma' and (h.get('c',set()) & vw))
        if kind in valu_like or kind == 'mfma':
            if is_dpp: req(2, lambda h: h['kind'] in valu_like and (h['w'] & vr))
            if kind == 'permlane': req(2, lambda h: h['kind'] in valu_like and (h['w'] & vr))
            if kind == 'readlane': req(1, lambda h: h['kind'] in valu_like and (h['w'] & vr))
            if kind != 'trans': req(1, lambda h: h['kind']=='trans' and (h['w'] & vr))
            if sr: req(2, lambda h: h['kind'] in valu_like and (h['w'] & sr))
            if vw: req(2, lambda h: h['kind']=='vmem' and h.get('wide') and (h['r'] & vw))
        if kind == 'vmem' and sr:
            req(5, lambda h: h['kind'] in valu_like and (h['w'] & sr))
        if kind == 'salu' and sr:
            req(1, lambda h: h['kind'] in valu_like and (h['w'] & sr))
        if need: self.nop(need)
        self.lines.append("    " + text)
        h = dict(kind=kind, w=w, r=r, states=1)
        if kind == 'mfma': h['c'] = c
        if kind == 'vmem' and ('store' in op) and ('x4' in op or 'x3' in op): h['wide'] = True
        self.hist.append(h)
        if len(self.hist) > 64: self.hist = self.hist[-64:]
    def text(self):
        return "\n".join(self.lines) + "\n"
```

```python
import sys, struct, math
from asmlib import Asm

NAME = "interleave_layers__sliding_block_cached__glu_gated_glu__decode"
STAMPS = "--stamps" in sys.argv
NT = " nt"

GS = 131072
OFF_P, OFF_MM, OFF_LL, OFF_STG, OFF_RAWG, OFF_CSG, OFF_XPA, OFF_XPB, GEND = 0, 65536, 66048, 66560, 67584, 75776, 83968, 92160, 100352
INIT = 8*GS
IS = 20480
I_RAWQ, I_CSQ, I_STQ, I_ID = 0, 8192, 16384, 16640
STAMP_OFF = 2*1024*1024
R_Q, R_W, R_G, R_D, R_CS = 0, 4096, 8192, 12288, 16384
S_Q, S_G = 20480, 20608
L_QL = 20736
L_AO = 21888
L_AM = 30592
L_MODE = 30720
LDS_BYTES = 32768

def f2u(f): return struct.unpack("<I", struct.pack("<f", f))[0]
C_SCALE = f2u((128**-0.5) * math.log2(math.e))
LOG2E = f2u(math.log2(math.e))

a = Asm()
A = a
uid = [0]
def L(prefix):
    uid[0] += 1
    return f"L_{prefix}_{uid[0]}"

NST = 16
def stamp(k):
    if not STAMPS: return
    assert k < NST
    A(f"s_memrealtime s[{66+2*k}:{67+2*k}]")

def stamp_flush():
    if not STAMPS: return
    A("s_waitcnt lgkmcnt(0)")
    A("s_lshl_b32 s52, s43, 4")
    for k in range(NST):
        A(f"s_add_u32 m0, s52, {k}")
        A("s_nop 1")
        A(f"v_writelane_b32 v27, s{66+2*k}, m0")
        A(f"s_mov_b32 s{66+2*k}, 0")

def store_mode(instr):
    l1 = L("st"); l2 = L("st")
    A("s_cmp_eq_u32 s31, 0")
    A(f"s_cbranch_scc1 {l1}")
    A(instr)
    A(f"s_branch {l2}")
    a.label(l1)
    A(instr + " sc1")
    a.label(l2)

def spin_head(l):
    A("s_mov_b32 s65, 0x400000")
    a.label(l)
    A("s_sub_u32 s65, s65, 1")
    A("s_cbranch_scc1 L_end")

def poll(loads, regs, tag, tmp=4):
    l = L("poll")
    spin_head(l)
    for x in loads: A(x)
    A("s_waitcnt vmcnt(0)")
    rs = list(regs)
    if len(rs) == 1:
        A(f"v_xor_b32 v{tmp}, {tag}, v{rs[0]}")
    else:
        A(f"v_bitop3_b32 v{tmp}, v{rs[0]}, v{rs[1]}, {tag} bitop3:0x7e")
        for r in rs[2:]:
            A(f"v_bitop3_b32 v{tmp}, v{tmp}, v{r}, {tag} bitop3:0xf6")
    A(f"v_and_b32 v{tmp}, 1, v{tmp}")
    A(f"v_cmp_ne_u32 vcc, 0, v{tmp}")
    A(f"s_cbranch_vccnz {l}")

def poll_nz(load, reg):
    l = L("pnz")
    spin_head(l)
    A(load)
    A("s_waitcnt vmcnt(0)")
    A(f"v_cmp_eq_u32 vcc, 0, v{reg}")
    A(f"s_cbranch_vccnz {l}")

DPP = " row_mask:0xf bank_mask:0xf"
def allreduce_rows(op, v, t):
    A(f"v_mov_b32 v{t}, v{v}")
    A(f"v_permlane16_swap_b32 v{v}, v{t}")
    A(f"{op} v{v}, v{v}, v{t}")
    A(f"v_mov_b32 v{t}, v{v}")
    A(f"v_permlane32_swap_b32 v{v}, v{t}")
    A(f"{op} v{v}, v{v}, v{t}")

def wave_is(lo, hi):
    ls = L("wv")
    if lo == hi - 1:
        A(f"s_cmp_lg_u32 s30, {lo}"); A(f"s_cbranch_scc1 {ls}")
        return ls
    if lo > 0:
        A(f"s_cmp_lt_u32 s30, {lo}"); A(f"s_cbranch_scc1 {ls}")
    if hi < 16:
        A(f"s_cmp_ge_u32 s30, {hi}"); A(f"s_cbranch_scc1 {ls}")
    return ls

def layer0_only():
    ls = L("l0")
    A("s_cmp_lg_u32 s43, 0"); A(f"s_cbranch_scc1 {ls}")
    return ls

WQ, WO, GU, DN = 8, 12, 16, 20

def unpack(wb):
    for i in range(4):
        A(f"v_lshlrev_b32 v{96+2*i}, 16, v{wb+i}")
        A(f"v_and_b32 v{97+2*i}, s45, v{wb+i}")

def lds_addr(rbase, sbase=None):
    A("s_lshl_b32 s52, s30, 8")
    A(f"s_add_u32 s52, s52, {rbase}")
    A("v_add_u32 v110, s52, v5")
    if sbase is not None:
        A("s_lshl_b32 s52, s30, 2")
        A(f"s_add_u32 s52, s52, {sbase}")
        A("v_lshrrev_b32 v111, 5, v0")
        A("v_lshl_add_u32 v111, v111, 6, s52")

def gemv_bfly(xr, stats):
    if xr is not None:
        for i in range(4):
            A(f"v_pk_mul_f32 v[{96+2*i}:{97+2*i}], v[{96+2*i}:{97+2*i}], v[{xr}:{xr+1}] op_sel_hi:[1,0]")
    if stats:
        A(f"v_mov_b32 v104, v{xr}")
        A(f"v_mul_f32 v105, v{xr}, v{xr}")
    for i in range(4):
        A(f"v_permlane32_swap_b32 v{96+i}, v{100+i}")
    if stats: A("v_permlane32_swap_b32 v104, v105")
    A("v_pk_add_f32 v[96:97], v[96:97], v[100:101]")
    A("v_pk_add_f32 v[98:99], v[98:99], v[102:103]")
    if stats:
        A("v_add_f32 v104, v104, v105")
        A("v_mov_b32 v105, v104")
    A("v_permlane16_swap_b32 v96, v98")
    A("v_permlane16_swap_b32 v97, v99")
    if stats: A("v_permlane16_swap_b32 v104, v105")
    A("v_pk_add_f32 v[96:97], v[96:97], v[98:99]")
    if stats: A("v_add_f32 v104, v104, v105")
    A(f"v_add_f32_dpp v96, v96, v96 row_ror:8{DPP}")
    A(f"v_add_f32_dpp v97, v97, v97 row_ror:8{DPP}")
    if stats: A(f"v_add_f32_dpp v104, v104, v104 row_ror:8{DPP}")
    A("s_mov_b64 exec, s[38:39]")
    A("ds_write_b64 v110, v[96:97]")
    if stats:
        A("s_mov_b32 exec_lo, 1"); A("s_mov_b32 exec_hi, 1")
        A("ds_write_b32 v111, v104")
    A("s_mov_b64 exec, -1")

def xgather_addr(off):
    A("v_and_b32 v3, 7, v0")
    A(f"v_lshlrev_b32 v3, {GS.bit_length()-1}, v3")
    A("v_lshl_add_u32 v3, v2, 11, v3")
    A("v_and_b32 v4, 8, v0")
    A("v_lshl_add_u32 v3, v4, 1, v3")
    A("s_lshl_b32 s52, s33, 9")
    A("s_lshl_b32 s53, s30, 5")
    A("s_add_u32 s52, s52, s53")
    A(f"s_add_u32 s52, s52, {off}")
    A("v_add_u32 v3, s52, v3")

def red4():
    A("v_permlane32_swap_b32 v104, v106")
    A("v_permlane32_swap_b32 v105, v107")
    A("v_pk_add_f32 v[104:105], v[104:105], v[106:107]")
    A("v_permlane16_swap_b32 v104, v105")
    A("v_add_f32 v104, v104, v105")

def xgather(tag):
    poll(["global_load_dwordx4 v[104:107], v3, s[26:27] sc1"], range(104, 108), tag)
    red4()
    for pat in ("quad_perm:[1,0,3,2]", "quad_perm:[2,3,0,1]", "row_half_mirror"):
        A(f"v_add_f32_dpp v104, v104, v104 {pat}{DPP}")
    A("v_cvt_pk_bf16_f32 v104, v104, v104")
    A("v_lshlrev_b32 v104, 16, v104")
    A("v_add_f32 v104, v104, v24")
    A("v_cvt_pk_bf16_f32 v104, v104, v104")
    A("v_lshlrev_b32 v24, 16, v104")

def final_data(rbase, nrows, tag):
    A("v_lshlrev_b32 v3, 2, v0")
    A(f"v_add_u32 v3, {rbase}, v3")
    npair = nrows // 2
    for k in range(npair):
        A(f"ds_read2st64_b32 v[{96+2*k}:{97+2*k}], v3 offset0:{2*k} offset1:{2*k+1}")
    if nrows & 1:
        A(f"ds_read_b32 v{96+2*npair}, v3 offset:{256*(nrows-1)}")
        A(f"v_mov_b32 v{97+2*npair}, 0")
        npair += 1
    A("s_waitcnt lgkmcnt(0)")
    regs = [96+2*k for k in range(npair)]
    while len(regs) > 1:
        nr = []
        for k in range(0, len(regs)-1, 2):
            A(f"v_pk_add_f32 v[{regs[k]}:{regs[k]+1}], v[{regs[k]}:{regs[k]+1}], v[{regs[k+1]}:{regs[k+1]+1}]")
            nr.append(regs[k])
        if len(regs) & 1: nr.append(regs[-1])
        regs = nr
    A("v_add_f32 v96, v96, v97")
    A(f"v_and_or_b32 v96, v96, -2, {tag}")

def final_stats(sbase):
    A("v_and_b32 v3, 31, v0")
    A("v_lshlrev_b32 v3, 2, v3")
    A(f"v_add_u32 v3, {sbase}, v3")
    A("ds_read_b32 v96, v3")
    A("s_waitcnt lgkmcnt(0)")
    for pat in ("quad_perm:[1,0,3,2]", "quad_perm:[2,3,0,1]", "row_half_mirror", "row_mirror"):
        A(f"v_add_f32_dpp v96, v96, v96 {pat}{DPP}")
    A("v_and_or_b32 v96, v96, -2, s46")

def stats_math(S):
    A(f"v_pk_add_f32 v[{S}:{S+1}], v[{S}:{S+1}], v[{S+2}:{S+3}]")
    A(f"v_pk_add_f32 v[{S+4}:{S+5}], v[{S+4}:{S+5}], v[{S+6}:{S+7}]")
    A(f"v_pk_add_f32 v[{S}:{S+1}], v[{S}:{S+1}], v[{S+4}:{S+5}]")
    A(f"v_mul_f32 v{S}, 0x3b000000, v{S}")
    A(f"v_mul_f32 v{S+1}, 0x3b000000, v{S+1}")
    A(f"v_fma_f32 v{S+1}, -v{S}, v{S}, v{S+1}")
    A(f"v_max_f32 v{S+1}, 0, v{S+1}")
    A(f"v_cvt_pk_bf16_f32 v{S+2}, v{S}, v{S+1}")
    A(f"v_lshlrev_b32 v{S}, 16, v{S+2}")
    A(f"v_and_b32 v{S+1}, s45, v{S+2}")
    A(f"v_add_f32 v{S+1}, 0x3727c5ac, v{S+1}")
    A(f"v_cvt_pk_bf16_f32 v{S+1}, v{S+1}, v{S+1}")
    A(f"v_lshlrev_b32 v{S+1}, 16, v{S+1}")
    A(f"v_sqrt_f32 v{S+1}, v{S+1}")
    A(f"v_cvt_pk_bf16_f32 v{S+1}, v{S+1}, v{S+1}")
    A(f"v_lshlrev_b32 v{S+1}, 16, v{S+1}")
    A(f"v_rcp_f32 v{S+1}, v{S+1}")

hdr = open(f"cdna_kernels/{NAME}.s.ref").read().split("\n")
for line in hdr:
    if line.startswith("; @launch"):
        a.raw(f"; @launch grid=(256,1,1) block=(1024,1,1) lds={LDS_BYTES}")
        break
    a.raw(line)
a.raw('.amdgcn_target "amdgcn-amd-amdhsa--gfx950"')
a.raw(".text")
a.raw(f".globl {NAME}_kernel")
a.raw(".p2align 8")
a.raw(f".type {NAME}_kernel,@function")
a.raw(f"{NAME}_kernel:")

A("s_cmp_ge_u32 s2, 256")
A("s_cbranch_scc1 L_end")
A("s_load_dwordx16 s[4:19], s[0:1], 0")
A("s_load_dwordx8 s[20:27], s[0:1], 64")
A("v_lshrrev_b32 v3, 6, v0")
A("s_and_b32 s28, s2, 7")
A("s_lshr_b32 s29, s2, 3")
A("v_readfirstlane_b32 s30, v3")
A("s_and_b32 s32, s29, 7")
A("s_lshr_b32 s33, s29, 3")
A("v_and_b32 v0, 63, v0")
A("v_and_b32 v1, 15, v0")
A("v_lshrrev_b32 v2, 4, v0")
A("v_and_b32 v4, 7, v0")
A("v_lshlrev_b32 v5, 5, v4")
A("v_lshl_add_u32 v5, v2, 3, v5")
A("v_bfe_u32 v6, v0, 3, 1")
A("v_lshl_add_u32 v6, v6, 2, v2")
A("v_mov_b32 v7, 0")
A("s_mov_b32 s40, 0x05040100")
A("s_mov_b32 s41, 0x07060302")
A(f"s_mov_b32 s44, {C_SCALE:#x}")
A("s_mov_b32 s45, 0xffff0000")
A("s_mov_b32 s31, 0")
A("s_mov_b32 s43, 0")
A("s_mov_b32 s46, 0")
A("s_mov_b32 s38, 0x00ff00ff"); A("s_mov_b32 s39, 0x00ff00ff")
A("v_mov_b32 v28, -1"); A("v_mov_b32 v29, -1"); A("v_mov_b32 v30, -1"); A("v_mov_b32 v31, -1")
if STAMPS:
    A("v_mov_b32 v27, 0")
    for k in range(NST): A(f"s_mov_b32 s{66+2*k}, 0")
A(f"s_lshl_b32 s52, s28, {GS.bit_length()-1}")
A(f"s_mul_i32 s53, s28, {IS}")
A(f"s_add_u32 s53, s53, {INIT}")
A("s_lshl_b32 s54, s33, 20"); A("s_lshl_b32 s55, s30, 16"); A("s_add_u32 s54, s54, s55")
A("s_lshl_b32 s55, s28, 10"); A("s_add_u32 s54, s54, s55"); A("s_lshl_b32 s55, s32, 7"); A("s_add_u32 s54, s54, s55")
A("v_lshlrev_b32 v96, 13, v6"); A("v_lshl_add_u32 v96, v4, 4, v96")
A("s_lshl_b32 s56, s33, 8"); A("s_lshl_b32 s57, s30, 4"); A("s_add_u32 s56, s56, s57")
A("v_lshl_add_u32 v97, v6, 1, s56")
A("v_lshlrev_b32 v98, 4, v0")
A("s_waitcnt lgkmcnt(0)")
stamp(0)
A("s_add_u32 s34, s26, s52"); A("s_addc_u32 s35, s27, 0")
A("s_add_u32 s36, s26, s53"); A("s_addc_u32 s37, s27, 0")
A("s_add_u32 s54, s10, s54"); A("s_addc_u32 s55, s11, 0")
lskip = L("noinit")
A("s_cmp_lg_u32 s29, 0"); A(f"s_cbranch_scc1 {lskip}")
A("s_lshl_b32 s52, s30, 10")
A("v_add_u32 v3, s52, v98")
A("global_store_dwordx4 v3, v[28:31], s[36:37] sc1")
l2 = wave_is(15, 16)
A("s_mov_b32 exec_lo, 0xffffff"); A("s_mov_b32 exec_hi, 0")
A("v_add_u32 v3, 16384, v98")
A("global_store_dwordx4 v3, v[28:31], s[36:37] sc1")
A("s_mov_b64 exec, -1")
a.label(l2)
a.label(lskip)
ls = wave_is(4, 8)
A("s_sub_u32 s52, s30, 4"); A("s_lshl_b32 s52, s52, 5"); A("s_add_u32 s52, s52, s29")
A(f"s_cmp_ge_u32 s52, {GEND//1024}"); A(f"s_cbranch_scc1 {ls}")
A("s_lshl_b32 s52, s52, 10")
A("v_add_u32 v3, s52, v98")
A("global_store_dwordx4 v3, v[28:31], s[34:35] sc1")
a.label(ls)
A("global_load_ushort v24, v97, s[4:5]")
A(f"global_load_dwordx4 v[{WQ}:{WQ+3}], v96, s[54:55]{NT}")
lskip = L("noinit")
A("s_cmp_lg_u32 s29, 0"); A(f"s_cbranch_scc1 {lskip}")
A("s_waitcnt vmcnt(2)")
A("s_barrier")
l2 = wave_is(15, 16)
A("s_mov_b64 exec, 1")
A("s_lshl_b32 s52, s28, 2")
A("v_mov_b32 v3, s52")
A("v_mov_b32 v4, 1")
A("global_store_dword v3, v4, s[24:25] sc1")
A("s_mov_b64 exec, -1")
a.label(l2)
a.label(lskip)
A("s_lshl_b32 s52, s28, 23")
A("s_lshl_b32 s53, s29, 15"); A("s_add_u32 s52, s52, s53")
A("s_lshl_b32 s53, s30, 13"); A("s_add_u32 s52, s52, s53")
A("s_add_u32 s52, s52, %d" % (28672*256 + 4096))
A("s_add_u32 s54, s6, s52"); A("s_addc_u32 s55, s7, 0")
A("s_add_u32 s56, s8, s52"); A("s_addc_u32 s57, s9, 0")
A("v_lshlrev_b32 v3, 8, v1")
A("v_lshl_add_u32 v3, v2, 4, v3")
A("v_lshlrev_b32 v4, 4, v1")
A("v_lshl_add_u32 v4, v2, 10, v4")
lds_addr(R_CS)
A("s_waitcnt vmcnt(0)")
stamp(1)
ls = wave_is(0, 4)
for t in range(2):
    for s in range(4):
        rb = 32 + 16*t + 4*s
        A(f"global_load_dwordx4 v[{rb}:{rb+3}], v3, s[54:55] offset:{t*4096 + s*64 - 4096}{NT}")
a.label(ls)
A("v_lshlrev_b32 v24, 16, v24")
unpack(WQ)
gemv_bfly(None, False)
A("s_branch L_qgemv")

a.label("L_loop")
xgather_addr(OFF_XPB)
unpack(WQ)
lds_addr(R_Q, S_Q)
xgather("0")
stamp(1)
A("s_branch L_qgemv2")
a.label("L_qgemv")
unpack(WQ)
lds_addr(R_Q, S_Q)
a.label("L_qgemv2")
gemv_bfly(24, True)
l0 = layer0_only()
ls = wave_is(0, 4)
A("s_waitcnt lgkmcnt(0)")
for i in range(8):
    rb = 96 + 4*i
    A(f"global_load_dwordx4 v[{rb}:{rb+3}], v4, s[56:57] offset:{(i&3)*256 + (i>>2)*4096 - 4096}{NT}")
a.label(ls)
ls = wave_is(15, 16)
A("s_lshl_b32 s52, s28, 2")
A("v_mov_b32 v3, s52")
poll_nz("global_load_dword v4, v3, s[24:25] sc1", 4)
A("s_getreg_b32 s53, hwreg(HW_REG_XCC_ID)")
A("s_and_b32 s53, s53, 0xff")
A("s_lshl_b32 s47, s53, 1")
A("s_lshl_b32 s52, s29, 2")
A(f"s_add_u32 s52, s52, {I_ID}")
A("s_mov_b64 exec, 1")
A("v_mov_b32 v3, s52")
A("v_mov_b32 v4, s47")
A("global_store_dword v3, v4, s[36:37] sc1")
A("s_mov_b64 exec, -1")
a.label(ls)
a.label(l0)
A("s_waitcnt lgkmcnt(0)")
A("s_barrier")
stamp(2)
ls = wave_is(4, 5)
final_data(R_Q, 16, "s46")
A("s_lshl_b32 s52, s33, 11"); A("s_lshl_b32 s53, s32, 8"); A("s_add_u32 s52, s52, s53")
A("v_lshl_add_u32 v3, v0, 2, s52")
store_mode("global_store_dword v3, v96, s[36:37]")
stamp(3)
a.label(ls)
ls = wave_is(5, 6)
final_stats(S_Q)
A("s_lshl_b32 s52, s32, 5"); A("s_lshl_b32 s53, s33, 3"); A("s_add_u32 s52, s52, s53")
A(f"s_add_u32 s52, s52, {I_STQ}")
A("v_lshl_add_u32 v3, v2, 2, s52")
A("s_mov_b32 exec_lo, 0x00010001"); A("s_mov_b32 exec_hi, 0")
store_mode("global_store_dword v3, v96, s[36:37]")
A("s_mov_b64 exec, -1")
a.label(ls)
ls = wave_is(6, 7)
l0 = layer0_only()
final_data(R_CS, 16, "0")
A("s_lshl_b32 s52, s33, 11"); A("s_lshl_b32 s53, s32, 8"); A("s_add_u32 s52, s52, s53")
A(f"s_add_u32 s52, s52, {I_CSQ}")
A("v_lshl_add_u32 v3, v0, 2, s52")
A("global_store_dword v3, v96, s[36:37] sc1")
a.label(l0)
a.label(ls)
ls = wave_is(8, 16)
A("s_sub_u32 s54, s30, 8")
A("s_lshl_b32 s52, s54, 8")
A("v_lshlrev_b32 v3, 11, v2")
A("v_lshl_add_u32 v3, v1, 4, v3")
A("v_add_u32 v3, s52, v3")
A("s_lshl_b32 s52, s54, 5")
A(f"s_add_u32 s52, s52, {I_STQ}")
A("v_mov_b32 v108, s52")
A("s_lshr_b32 s52, s54, 1"); A("s_mul_i32 s52, s52, 272")
A("s_and_b32 s53, s54, 1"); A("s_lshl_b32 s53, s53, 7"); A("s_add_u32 s52, s52, s53")
A(f"s_add_u32 s52, s52, {L_QL}")
A("v_lshlrev_b32 v109, 3, v1")
A("v_lshl_add_u32 v109, v2, 1, v109")
A("v_add_u32 v109, s52, v109")
l0 = layer0_only()
A(f"v_add_u32 v110, {I_CSQ}, v3")
poll(["global_load_dwordx4 v[104:107], v110, s[36:37] sc1"], range(104, 108), "0")
red4()
A("v_mov_b32 v25, v104")
a.label(l0)
poll(["global_load_dwordx4 v[104:107], v3, s[36:37] sc1",
      "global_load_dwordx4 v[112:115], v108, s[36:37] sc1",
      "global_load_dwordx4 v[116:119], v108, s[36:37] offset:16 sc1"], list(range(104, 108)) + list(range(112, 120)), "s46")
stats_math(112)
red4()
A("v_fma_f32 v104, -v112, v25, v104")
A("v_mul_f32 v104, v104, v113")
A("v_cvt_pk_bf16_f32 v104, v104, v104")
A("ds_write_b16 v109, v104")
l0 = layer0_only()
l2 = wave_is(15, 16)
A("s_mov_b32 exec_lo, -1"); A("s_mov_b32 exec_hi, 0")
A("v_lshlrev_b32 v3, 2, v0")
A(f"v_add_u32 v3, {I_ID}, v3")
poll(["global_load_dword v108, v3, s[36:37] sc1"], [108], "0")
A("v_cmp_ne_u32 vcc, s47, v108")
A("s_cmp_eq_u64 vcc, 0")
A("s_cselect_b32 s52, 1, 0")
A("s_mov_b64 exec, -1")
A(f"v_mov_b32 v3, {L_MODE}")
A("v_mov_b32 v4, s52")
A("ds_write_b32 v3, v4")
a.label(l2)
a.label(l0)
A("s_waitcnt lgkmcnt(0)")
a.label(ls)
A("s_barrier")
stamp(4)
l0 = layer0_only()
A("s_lshl_b32 s52, s28, 19"); A("s_lshl_b32 s53, s33, 17"); A("s_add_u32 s52, s52, s53")
A("s_lshl_b32 s53, s30, 13"); A("s_add_u32 s52, s52, s53"); A("s_lshl_b32 s53, s32, 7"); A("s_add_u32 s52, s52, s53")
A("s_add_u32 s54, s12, s52"); A("s_addc_u32 s55, s13, 0")
A("v_and_b32 v4, 7, v0")
A("v_lshlrev_b32 v3, 10, v6"); A("v_lshl_add_u32 v3, v4, 4, v3")
A(f"global_load_dwordx4 v[{WO}:{WO+3}], v3, s[54:55]{NT}")
ls = wave_is(4, 16)
A(f"v_mov_b32 v3, {L_MODE}")
A("ds_read_b32 v3, v3")
A("s_waitcnt lgkmcnt(0)")
A("v_readfirstlane_b32 s31, v3")
l2 = L("nof2")
A("s_cmp_lg_u32 s29, 0"); A(f"s_cbranch_scc1 {l2}")
A("s_cmp_lg_u32 s30, 4"); A(f"s_cbranch_scc1 {l2}")
A("s_lshl_b32 s52, s28, 2"); A("s_add_u32 s52, s52, 32")
A("s_mov_b64 exec, 1")
A("v_mov_b32 v3, s52"); A("v_mov_b32 v4, 1")
A("global_store_dword v3, v4, s[24:25] sc1")
A("s_mov_b64 exec, -1")
a.label(l2)
a.label(ls)
a.label(l0)

def qk_stage(QB, SB, first):
    A("v_and_b32 v3, 3, v1")
    A("v_mul_u32_u24 v3, 272, v3")
    A("v_lshl_add_u32 v3, v2, 4, v3")
    for s in range(4):
        A(f"ds_read_b128 v[{QB+4*s}:{QB+4*s+3}], v3 offset:{L_QL + 64*s}")
    if first: A("s_waitcnt vmcnt(9)")
    for s in range(4):
        A(f"s_waitcnt lgkmcnt({3-s})")
        for t in range(2):
            kb = 32 + 16*t + 4*s
            c = "0" if s == 0 else f"v[{SB+4*t}:{SB+3+4*t}]"
            A(f"v_mfma_f32_16x16x32_bf16 v[{SB+4*t}:{SB+3+4*t}], v[{kb}:{kb+3}], v[{QB+4*s}:{QB+3+4*s}], {c}")
    A(f"v_max3_f32 v3, v{SB}, v{SB+1}, v{SB+2}")
    A(f"v_max3_f32 v3, v3, v{SB+3}, v{SB+4}")
    A(f"v_max3_f32 v3, v3, v{SB+5}, v{SB+6}")
    A(f"v_max_f32 v3, v3, v{SB+7}")
    allreduce_rows("v_max_f32", 3, 4)
    A("v_mul_f32 v3, s44, v3")
    for i in range(8):
        A(f"v_fma_f32 v{SB+i}, v{SB+i}, s44, -v3")
    for i in range(8):
        A(f"v_exp_f32 v{SB+i}, v{SB+i}")
    for p in range(4):
        A(f"v_cvt_pk_bf16_f32 v{28+p}, v{SB+2*p}, v{SB+1+2*p}")
    A(f"v_add_f32 v4, v{SB}, v{SB+1}"); A(f"v_add_f32 v{QB}, v{SB+2}, v{SB+3}")
    A(f"v_add_f32 v4, v4, v{SB+4}"); A(f"v_add_f32 v{QB}, v{QB}, v{SB+5}")
    A(f"v_add_f32 v4, v4, v{SB+6}"); A(f"v_add_f32 v{QB}, v{QB}, v{SB+7}")
    A(f"v_add_f32 v4, v4, v{QB}")

ls = wave_is(0, 4)
l1 = L("att1"); l2 = L("att2")
A("s_cmp_lg_u32 s43, 0"); A(f"s_cbranch_scc1 {l1}")
qk_stage(72, 64, True)
stamp(5)
A("s_waitcnt vmcnt(1)")
stamp(6)
for c in range(4):
    for p in range(4):
        lo = 96 + 4*(2*p) + c; hi = 96 + 4*(2*p+1) + c
        A(f"v_perm_b32 v{64 + 4*(2*c) + p}, v{hi}, v{lo}, s40")
        A(f"v_perm_b32 v{64 + 4*(2*c+1) + p}, v{hi}, v{lo}, s41")
A("s_nop 1")
A(f"s_branch {l2}")
a.label(l1)
qk_stage(104, 96, False)
a.label(l2)
a.nop(2)
for e in range(8):
    A(f"v_mfma_f32_16x16x32_bf16 v[{96+4*e}:{99+4*e}], v[{64+4*e}:{67+4*e}], v[28:31], 0")
allreduce_rows("v_add_f32", 4, 28)
A("s_mul_i32 s52, s30, 2176")
A(f"s_add_u32 s52, s52, {L_AO}")
A("v_lshl_add_u32 v29, v2, 2, v1")
A("v_lshl_add_u32 v29, v29, 4, s52")
A("s_lshl_b32 s52, s30, 2")
A(f"s_add_u32 s52, s52, {L_AM}")
A("v_lshl_add_u32 v28, v1, 4, s52")
A("s_mov_b64 exec, 0xf")
A("ds_write2_b32 v28, v3, v4 offset0:0 offset1:16")
A("s_mov_b32 s52, 0x000f000f")
A("s_mov_b32 s53, 0x000f000f")
A("s_mov_b64 exec, s[52:53]")
for e in range(8):
    A(f"ds_write_b128 v29, v[{96+4*e}:{99+4*e}] offset:{272*e}")
A("s_mov_b64 exec, -1")
A("s_waitcnt lgkmcnt(0)")
a.label(ls)
ls = wave_is(4, 12)
A("s_sub_u32 s52, s30, 4")
A("s_lshr_b32 s53, s52, 1")
A("s_and_b32 s52, s52, 1")
A("s_lshl_b32 s52, s52, 6")
A("v_add_u32 v96, s52, v0")
A("v_and_b32 v97, 7, v96")
A("v_mul_u32_u24 v97, 272, v97")
A("v_lshrrev_b32 v98, 5, v96")
A("v_lshl_add_u32 v97, v98, 6, v97")
A("v_bfe_u32 v98, v96, 3, 2")
A("v_lshl_add_u32 v97, v98, 2, v97")
A("s_lshl_b32 s54, s53, 4")
A(f"s_add_u32 s55, s54, {L_AO}")
A("v_add_u32 v97, s55, v97")
A(f"s_add_u32 s55, s54, {L_AM}")
A("v_mov_b32 v99, s55")
A("v_lshrrev_b32 v98, 3, v96")
A("v_lshlrev_b32 v98, 10, v98")
A("v_and_b32 v115, 7, v96")
A("v_lshl_add_u32 v98, v115, 2, v98")
A("s_lshl_b32 s54, s53, 14")
A("s_lshl_b32 s55, s29, 5")
A("s_add_u32 s54, s54, s55")
A("v_add_u32 v98, s54, v98")
A("s_lshl_b32 s54, s53, 7"); A("s_lshl_b32 s55, s29, 2"); A("s_add_u32 s54, s54, s55")
A(f"s_add_u32 s54, s54, {OFF_MM}")
A("v_lshl_add_u32 v115, v0, 9, s54")
a.label(ls)
A("s_barrier")
stamp(7)
ls = wave_is(4, 12)
A("ds_read_b128 v[100:103], v99")
A("ds_read_b128 v[104:107], v99 offset:64")
for k in range(4):
    A(f"ds_read_b32 v{108+k}, v97 offset:{2176*k}")
A("s_waitcnt lgkmcnt(5)")
A("v_max3_f32 v112, v100, v101, v102")
A("v_max_f32 v112, v112, v103")
for k in range(4):
    A(f"v_sub_f32 v{100+k}, v{100+k}, v112")
for k in range(4):
    A(f"v_exp_f32 v{100+k}, v{100+k}")
A("s_waitcnt lgkmcnt(0)")
A("v_mul_f32 v114, v100, v108")
A("v_mul_f32 v113, v100, v104")
for k in range(1, 4):
    A(f"v_fmac_f32 v114, v{100+k}, v{108+k}")
    A(f"v_fmac_f32 v113, v{100+k}, v{104+k}")
A("v_and_or_b32 v114, v114, -2, s46")
A("v_cmp_eq_u32 vcc, 0, v0")
A("v_cndmask_b32 v112, v113, v112, vcc")
A("v_and_or_b32 v112, v112, -2, s46")
store_mode("global_store_dword v98, v114, s[34:35]")
l2 = L("noml")
A("s_cmp_lg_u32 s52, 0"); A(f"s_cbranch_scc1 {l2}")
A("s_mov_b64 exec, 3")
store_mode("global_store_dword v115, v112, s[34:35]")
A("s_mov_b64 exec, -1")
a.label(l2)
stamp(8)
a.label(ls)

l0 = layer0_only()
ls = wave_is(14, 15)
A("v_lshlrev_b32 v3, 2, v0")
A("s_mov_b64 exec, 0xff")
poll_nz("global_load_dword v4, v3, s[24:25] offset:32 sc1", 4)
A("s_mov_b64 exec, -1")
a.label(ls)
A("s_mul_i32 s52, s33, %d" % (128*3584)); A("s_mul_i32 s53, s30, %d" % (8*3584)); A("s_add_u32 s52, s52, s53")
A("s_mul_i32 s53, s28, 448"); A("s_add_u32 s52, s52, s53"); A("s_lshl_b32 s53, s32, 6"); A("s_add_u32 s52, s52, s53")
A("s_add_u32 s54, s16, s52"); A("s_addc_u32 s55, s17, 0"); A("s_add_u32 s56, s18, s52"); A("s_addc_u32 s57, s19, 0")
A("v_mul_u32_u24 v122, 3584, v6"); A("v_and_b32 v4, 3, v0"); A("v_lshl_add_u32 v122, v4, 4, v122")
A("s_mul_i32 s52, s28, 224"); A("s_mul_i32 s53, s33, 56"); A("s_add_u32 s52, s52, s53"); A("s_lshl_b32 s53, s30, 3"); A("s_add_u32 s52, s52, s53")
A("s_lshl_b32 s52, s52, 10"); A("s_lshl_b32 s53, s32, 7"); A("s_add_u32 s52, s52, s53")
A("s_add_u32 s58, s20, s52"); A("s_addc_u32 s59, s21, 0")
A("v_and_b32 v4, 7, v0")
A("v_lshlrev_b32 v123, 10, v6"); A("v_lshl_add_u32 v123, v4, 4, v123")
A("s_waitcnt vmcnt(0)")
a.label(l0)
unpack(WO)
lds_addr(R_W)
A("v_and_b32 v4, 7, v0")
A("v_lshl_add_u32 v108, v2, 3, v4")
A("v_lshlrev_b32 v3, 5, v108")
A("v_and_b32 v109, 8, v0")
A("v_lshl_add_u32 v3, v109, 1, v3")
A("s_lshl_b32 s52, s33, 14"); A("s_lshl_b32 s53, s30, 10"); A("s_add_u32 s52, s52, s53")
A("v_add_u32 v3, s52, v3")
A("s_lshl_b32 s52, s33, 7"); A(f"s_add_u32 s52, s52, {OFF_MM}")
A("v_lshl_add_u32 v108, v108, 2, s52")
A("v_lshl_add_u32 v109, v4, 4, s52")
poll(["global_load_dwordx4 v[116:119], v109, s[34:35] sc1",
      "global_load_dword v112, v108, s[34:35] sc1",
      "global_load_dword v113, v108, s[34:35] offset:512 sc1",
      "global_load_dwordx4 v[104:107], v3, s[34:35] sc1"], [116,117,118,119,112,113,104,105,106,107], "s46")
stamp(9)
l0 = layer0_only()
l2 = L("nogu")
A("s_cmp_ge_u32 s32, 7"); A(f"s_cbranch_scc1 {l2}")
A("s_mov_b32 s52, 0x0f0f0f0f"); A("s_mov_b32 s53, 0x0f0f0f0f")
A("s_mov_b64 exec, s[52:53]")
A(f"global_load_dwordx4 v[{GU}:{GU+3}], v122, s[54:55]{NT}")
A("s_not_b64 exec, s[52:53]")
A(f"global_load_dwordx4 v[{GU}:{GU+3}], v122, s[56:57]{NT}")
A("s_mov_b64 exec, -1")
a.label(l2)
ls = wave_is(0, 7)
A(f"global_load_dwordx4 v[{DN}:{DN+3}], v123, s[58:59]{NT}")
a.label(ls)
a.label(l0)
A("v_max3_f32 v114, v116, v117, v118")
A("v_max_f32 v114, v114, v119")
for pat in ("quad_perm:[1,0,3,2]", "quad_perm:[2,3,0,1]", "row_half_mirror"):
    A(f"v_max_f32_dpp v114, v114, v114 {pat}{DPP}")
A("v_sub_f32 v112, v112, v114")
A("v_exp_f32 v112, v112")
A("v_pk_mul_f32 v[104:105], v[104:105], v[112:113] op_sel_hi:[1,0]")
A("v_pk_mul_f32 v[106:107], v[106:107], v[112:113] op_sel_hi:[1,0]")
A("v_mul_f32 v120, v112, v113")
A("v_mov_b32 v121, v120")
A("v_permlane32_swap_b32 v104, v106")
A("v_permlane32_swap_b32 v105, v107")
A("v_permlane32_swap_b32 v120, v121")
A("v_pk_add_f32 v[104:105], v[104:105], v[106:107]")
A("v_add_f32 v120, v120, v121")
A("v_mov_b32 v121, v120")
A("v_permlane16_swap_b32 v104, v105")
A("v_permlane16_swap_b32 v120, v121")
A("v_add_f32 v104, v104, v105")
A("v_add_f32 v120, v120, v121")
for pat in ("quad_perm:[1,0,3,2]", "quad_perm:[2,3,0,1]", "row_half_mirror"):
    A(f"v_add_f32_dpp v120, v120, v120 {pat}{DPP}")
    A(f"v_add_f32_dpp v104, v104, v104 {pat}{DPP}")
A("v_rcp_f32 v120, v120")
A("v_mul_f32 v104, v104, v120")
A("v_cvt_pk_bf16_f32 v104, v104, v104")
A("v_lshlrev_b32 v122, 16, v104")
gemv_bfly(122, False)
A("s_waitcnt lgkmcnt(0)")
A("s_barrier")
stamp(10)
ls = wave_is(8, 9)
final_data(R_W, 16, "s46")
A("s_lshl_b32 s52, s33, 11"); A("s_lshl_b32 s53, s32, 8"); A("s_add_u32 s52, s52, s53")
A(f"s_add_u32 s52, s52, {OFF_XPA}")
A("v_lshl_add_u32 v3, v0, 2, s52")
A("global_store_dword v3, v96, s[34:35] sc1")
a.label(ls)

l0 = layer0_only()
A("s_waitcnt vmcnt(0)")
l2 = L("nocs")
A("s_cmp_ge_u32 s32, 7"); A(f"s_cbranch_scc1 {l2}")
unpack(GU)
lds_addr(R_CS)
gemv_bfly(None, False)
a.label(l2)
a.label(l0)
xgather_addr(OFF_XPA)
unpack(GU)
lds_addr(R_G, S_G)
xgather("s46")
stamp(11)
lnog = L("nog")
A("s_cmp_ge_u32 s32, 7"); A(f"s_cbranch_scc1 {lnog}")
gemv_bfly(24, True)
A("s_waitcnt lgkmcnt(0)")
A("s_barrier")
ls = wave_is(8, 9)
final_data(R_G, 16, "s46")
A("s_lshl_b32 s52, s33, 11"); A("s_lshl_b32 s53, s32, 8"); A("s_add_u32 s52, s52, s53")
A(f"s_add_u32 s52, s52, {OFF_RAWG}")
A("v_lshl_add_u32 v3, v0, 2, s52")
store_mode("global_store_dword v3, v96, s[34:35]")
stamp(12)
a.label(ls)
ls = wave_is(9, 10)
final_stats(S_G)
A("s_lshl_b32 s52, s32, 5"); A("s_lshl_b32 s53, s33, 3"); A("s_add_u32 s52, s52, s53")
A(f"s_add_u32 s52, s52, {OFF_STG}")
A("v_lshl_add_u32 v3, v2, 2, s52")
A("s_mov_b32 exec_lo, 0x00010001"); A("s_mov_b32 exec_hi, 0")
store_mode("global_store_dword v3, v96, s[34:35]")
A("s_mov_b64 exec, -1")
a.label(ls)
ls = wave_is(10, 11)
l0 = layer0_only()
final_data(R_CS, 16, "0")
A("s_lshl_b32 s52, s33, 11"); A("s_lshl_b32 s53, s32, 8"); A("s_add_u32 s52, s52, s53")
A(f"s_add_u32 s52, s52, {OFF_CSG}")
A("v_lshl_add_u32 v3, v0, 2, s52")
store_mode("global_store_dword v3, v96, s[34:35]")
a.label(l0)
a.label(ls)
a.label(lnog)

ls = wave_is(0, 7)
unpack(DN)
lds_addr(R_D)
A("s_mul_i32 s52, s33, 56"); A("s_lshl_b32 s53, s30, 3"); A("s_add_u32 s52, s52, s53")
A("s_lshr_b32 s53, s52, 5")
A("s_and_b32 s52, s52, 31")
A("s_lshl_b32 s52, s52, 2")
A("s_lshl_b32 s54, s53, 8"); A("s_add_u32 s52, s52, s54")
A(f"s_add_u32 s52, s52, {OFF_RAWG}")
A("v_and_b32 v3, 3, v0")
A("v_lshlrev_b32 v3, 11, v3")
A("v_and_b32 v4, 4, v0")
A("v_lshl_add_u32 v3, v4, 5, v3")
A("v_lshl_add_u32 v3, v6, 2, v3")
A("v_add_u32 v3, s52, v3")
A("s_lshl_b32 s53, s53, 5"); A(f"s_add_u32 s53, s53, {OFF_STG}")
A("v_mov_b32 v108, s53")
A("v_cmp_ne_u32 s[48:49], 0, v4")
l0 = layer0_only()
A(f"v_add_u32 v109, {OFF_CSG-OFF_RAWG}, v3")
poll(["global_load_dword v104, v109, s[34:35] sc1"], [104], "0")
for pat in ("quad_perm:[1,0,3,2]", "quad_perm:[2,3,0,1]"):
    A(f"v_add_f32_dpp v104, v104, v104 {pat}{DPP}")
A("v_mov_b32 v26, v104")
a.label(l0)
poll(["global_load_dwordx4 v[112:115], v108, s[34:35] sc1",
      "global_load_dwordx4 v[116:119], v108, s[34:35] offset:16 sc1",
      "global_load_dword v104, v3, s[34:35] sc1"], list(range(112, 120)) + [104], "s46")
stamp(13)
stats_math(112)
for pat in ("quad_perm:[1,0,3,2]", "quad_perm:[2,3,0,1]"):
    A(f"v_add_f32_dpp v104, v104, v104 {pat}{DPP}")
A("v_fma_f32 v104, -v112, v26, v104")
A("v_mul_f32 v104, v104, v113")
A("v_cvt_pk_bf16_f32 v104, v104, v104")
A("v_lshlrev_b32 v104, 16, v104")
A(f"v_mov_b32_dpp v105, v104 row_half_mirror{DPP}")
A("v_cndmask_b32 v106, v104, v105, s[48:49]")
A("v_cndmask_b32 v107, v105, v104, s[48:49]")
A(f"v_mul_f32 v106, {LOG2E ^ 0x80000000:#x}, v106")
A("v_exp_f32 v106, v106")
A("v_add_f32 v106, 1.0, v106")
A("v_rcp_f32 v106, v106")
A("v_cvt_pk_bf16_f32 v106, v106, v106")
A("v_lshlrev_b32 v106, 16, v106")
A("v_mul_f32 v106, v106, v107")
A("v_cvt_pk_bf16_f32 v106, v106, v106")
A("v_lshlrev_b32 v122, 16, v106")
gemv_bfly(122, False)
A("s_waitcnt lgkmcnt(0)")
a.label(ls)
A("s_barrier")
ls = wave_is(8, 9)
final_data(R_D, 7, "s46")
A("s_lshl_b32 s52, s33, 11"); A("s_lshl_b32 s53, s32, 8"); A("s_add_u32 s52, s52, s53")
A(f"s_add_u32 s52, s52, {OFF_XPB}")
A("v_lshl_add_u32 v3, v0, 2, s52")
A("global_store_dword v3, v96, s[34:35] sc1")
stamp(14)
a.label(ls)
stamp_flush()
A("s_add_u32 s43, s43, 1")
A("s_mov_b32 s46, 1")
A("s_cmp_lt_u32 s43, 2")
A("s_cbranch_scc1 L_loop")

lfin = L("fin")
A("s_or_b32 s52, s28, s32")
A("s_cmp_lg_u32 s52, 0")
A(f"s_cbranch_scc1 {lfin}")
xgather_addr(OFF_XPB)
xgather("1")
A("s_lshl_b32 s56, s33, 8"); A("s_lshl_b32 s57, s30, 4"); A("s_add_u32 s56, s56, s57")
A("v_lshl_add_u32 v3, v6, 1, s56")
A("s_mov_b32 s52, 0x01010101"); A("s_mov_b32 s53, 0x01010101")
A("s_mov_b64 exec, s[52:53]")
A("global_store_short v3, v104, s[22:23]")
A("s_mov_b64 exec, -1")
stamp(0)
a.label(lfin)
if STAMPS:
    stamp_flush()
    A("s_lshl_b32 s52, s2, 12"); A("s_lshl_b32 s53, s30, 8"); A("s_add_u32 s52, s52, s53")
    A(f"s_add_u32 s52, s52, {STAMP_OFF}")
    A("v_lshl_add_u32 v3, v0, 2, s52")
    A("global_store_dword v3, v27, s[26:27]")
a.label("L_end")
A("s_endpgm")
a.raw('.section .rodata,"a"')
a.raw(".p2align 6")
a.raw(f".amdhsa_kernel {NAME}_kernel")
a.raw("  .amdhsa_next_free_vgpr 128")
a.raw("  .amdhsa_next_free_sgpr 100")
a.raw("  .amdhsa_accum_offset 128")
a.raw("  .amdhsa_group_segment_fixed_size 0")
a.raw("  .amdhsa_kernarg_size 96")
a.raw("  .amdhsa_user_sgpr_count 2")
a.raw("  .amdhsa_user_sgpr_kernarg_segment_ptr 1")
a.raw("  .amdhsa_system_sgpr_workgroup_id_x 1")
a.raw(".end_amdhsa_kernel")
out = [x for x in sys.argv[1:] if not x.startswith("--")]
open(out[0] if out else f"cdna_kernels/{NAME}.s", "w").write(a.text())
```
